```python
import torch

def _softmax(x, axis=-1):
    return torch.softmax(x, dim=axis)
def _gelu(x):
    return torch.nn.functional.gelu(x, approximate="tanh")
def _silu(x):
    return torch.nn.functional.silu(x)
def _sigmoid(x):
    return torch.sigmoid(x)
def _layernorm(x, axis=-1, eps=1e-5):
    m = x.mean(dim=axis, keepdim=True)
    v = x.var(dim=axis, keepdim=True, unbiased=False)
    return (x - m) / torch.sqrt(v + eps)
def _scatter_add(tgt, idx, src, axis=0):
    return tgt.clone().index_add_(axis, idx, src)
def _segment_sum(src, seg, n):
    out = torch.zeros((n,) + src.shape[1:], dtype=src.dtype)
    return out.index_add_(0, seg, src)
def _pad(x, pw):
    flat = tuple(v for pair in reversed(pw) for v in pair)
    return torch.nn.functional.pad(x, flat)

kernel_name = 'sequential_preLN__ssm_conv_s4d__glu_gated_reglu__prompt'

def setup_inputs():

    _w = (lambda a: (lambda t: t.to(torch.bfloat16) if t.is_floating_point() else t)(torch.as_tensor(a)))
    def _A_setup():
        Bsz, L, D, N = 1, 2048, 512, 128
        return {
            "u": _w((lambda *s: torch.randn(*s, dtype=torch.bfloat16) * 0.05)(Bsz, L, D)),
            "log_A_real": _w((lambda *s: torch.randn(*s, dtype=torch.bfloat16) * 6.4)(D, N) * 0.5),
            "A_imag": _w((lambda *s: torch.randn(*s, dtype=torch.bfloat16) * 0.05)(D, N) * 3.14),
            "C_real": _w((lambda *s: torch.randn(*s, dtype=torch.bfloat16) * 0.05)(D, N) / N ** 0.5),
            "C_imag": _w((lambda *s: torch.randn(*s, dtype=torch.bfloat16) * 0.05)(D, N) / N ** 0.5),
            "log_dt": _w((lambda *s: torch.randn(*s, dtype=torch.bfloat16) * 0.05)(D) * 0.5 - 4.0),
            "D_skip": _w((lambda *s: torch.randn(*s, dtype=torch.bfloat16) * 0.05)(D)),
        }
    _A_in = _A_setup()

    def _B_setup():
        B, S, D, F = 1, 2048, 512, 1376
        return {
            "x": _w((lambda *s: torch.randn(*s, dtype=torch.bfloat16) * 0.05)(B, S, D)),
            "W_gate": _w((lambda *s: torch.randn(*s, dtype=torch.bfloat16) * 0.4)(D, F) * (2.0 / D) ** 0.5),
            "W_up": _w((lambda *s: torch.randn(*s, dtype=torch.bfloat16) * 0.4)(D, F) * (2.0 / D) ** 0.5),
            "W_down": _w((lambda *s: torch.randn(*s, dtype=torch.bfloat16) * 0.4)(F, D) * (1.0 / F) ** 0.5),
        }
    _B_in = _B_setup()

    return {
        "A_u": _A_in["u"],
        "A_log_A_real": _A_in["log_A_real"],
        "A_A_imag": _A_in["A_imag"],
        "A_C_real": _A_in["C_real"],
        "A_C_imag": _A_in["C_imag"],
        "A_log_dt": _A_in["log_dt"],
        "A_D_skip": _A_in["D_skip"],
        "B_x": _B_in["x"],
        "B_W_gate": _B_in["W_gate"],
        "B_W_up": _B_in["W_up"],
        "B_W_down": _B_in["W_down"],
    }

def reference(A_u, A_log_A_real, A_A_imag, A_C_real, A_C_imag, A_log_dt, A_D_skip, B_x, B_W_gate, B_W_up, B_W_down):
    def _A_ref(u, log_A_real, A_imag, C_real, C_imag, log_dt, D_skip):
        L = u.shape[1]
        dt = torch.exp(log_dt)
        A = -torch.exp(log_A_real) + 1j * A_imag
        C = (C_real + 1j * C_imag) * dt[:, None]
        pos = (lambda x, dt: x.to(dt))(torch.arange(L), log_dt.dtype)
        P = torch.exp((A * dt[:, None])[:, :, None] * pos[None, None, :])
        K = 2.0 * torch.einsum("dn,dnl->dl", C, P).real
        L2 = 2 * L
        u_t = (lambda x, *d: x.permute(*d))(u, 0, 2, 1)
        Kf = (lambda x, *a, **k: torch.fft.rfft(x.float(), *a, **k))(K, L2)
        Uf = (lambda x, *a, **k: torch.fft.rfft(x.float(), *a, **k))(u_t, L2)
        y = (lambda x, *a, **k: torch.fft.irfft(x, *a, **k).to(torch.bfloat16))(Uf * Kf[None, :, :], L2)[:, :, :L]
        y = (lambda x, *d: x.permute(*d))(y, 0, 2, 1)
        return y + u * D_skip[None, None, :]

    def _B_ref(x, W_gate, W_up, W_down):
        gate = torch.einsum("bsd,df->bsf", x, W_gate)
        up = torch.einsum("bsd,df->bsf", x, W_up)
        gate = gate * (lambda x, dt: x.to(dt))(gate > 0, gate.dtype)
        h = gate * up
        return torch.einsum("bsf,fd->bsd", h, W_down)

    x = A_u
    h = x + _A_ref(_layernorm(x, axis=-1), A_log_A_real, A_A_imag, A_C_real, A_C_imag, A_log_dt, A_D_skip)
    h2 = h + _B_ref(_layernorm(h, axis=-1), B_W_gate, B_W_up, B_W_down)
    return h2
```

```python
import re
TRANS = ('v_exp_f32','v_log_f32','v_rcp_f32','v_rsq_f32','v_sqrt_f32','v_sin_f32','v_cos_f32')
def parse_regs(tok):
    tok = tok.strip()
    tok = tok.lstrip('-')
    m = re.match(r'^abs\((.*)\)$', tok)
    if m: tok = m.group(1)
    m = re.match(r'^\|(.*)\|$', tok)
    if m: tok = m.group(1)
    m = re.match(r'^([vas])(\d+)$', tok)
    if m: return {(m.group(1), int(m.group(2)))}
    m = re.match(r'^([vas])\[(\d+):(\d+)\]$', tok)
    if m: return {(m.group(1), i) for i in range(int(m.group(2)), int(m.group(3))+1)}
    if tok == 'vcc': return {('s', 106), ('s', 107)}
    if tok == 'exec': return {('s', 126), ('s', 127)}
    if tok == 'm0': return {('s', 124)}
    return set()

class Inst:
    def __init__(self, text):
        self.text = text
        t = text.split(';')[0].strip()
        parts = t.split(None, 1)
        self.op = parts[0]
        rest = parts[1] if len(parts) > 1 else ''
        ops = []; depth = 0; cur = ''
        for ch in rest:
            if ch == '[': depth += 1
            if ch == ']': depth -= 1
            if ch == ',' and depth == 0:
                ops.append(cur); cur = ''
            else: cur += ch
        if cur.strip(): ops.append(cur)
        clean = []
        for o in ops:
            o = o.strip()
            clean.append(o.split()[0] if o else o)
        self.ops = clean
        op = self.op
        self.kind = 'other'; self.w = set(); self.r = set(); self.ws = 1
        R = [parse_regs(o) for o in clean]
        if op == 's_nop':
            self.kind = 'nop'; self.ws = int(clean[0]) + 1
        elif op.startswith('v_mfma'):
            self.kind = 'mfma'; self.w = R[0]; self.r = R[1] | R[2] | R[3]; self.srcc = R[3]; self.ab = R[1] | R[2]
            self.passes = 8 if '32x32' in op else 4
        elif op.startswith('v_'):
            self.kind = 'valu'
            if op.startswith('v_cmp'):
                self.w = R[0]; self.r = set().union(*R[1:])
            elif op.startswith('v_permlane') and 'swap' in op:
                self.w = R[0] | R[1]; self.r = R[0] | R[1]
            else:
                self.w = R[0]; self.r = set().union(*R[1:]) if len(R) > 1 else set()
                if op.startswith('v_fmac') or op.startswith('v_dot2c') or op.startswith('v_pk_fmac'): self.r |= R[0]
                if op.startswith('v_cndmask') and len(R) == 3: self.r |= parse_regs('vcc')
                if op.startswith('v_add_co') or op.startswith('v_addc_co'): self.w |= R[1]
            self.trans = op in TRANS or any(op.startswith(x) for x in TRANS)
            self.dot = op.startswith('v_dot')
            self.dpp = 'dpp' in op or 'quad_perm' in t or 'row_' in t
            self.perml = op.startswith('v_permlane')
            self.rdl = op.startswith('v_readfirstlane') or op.startswith('v_readlane')
        elif op.startswith('ds_read') or op.startswith('ds_bpermute') or op.startswith('ds_swizzle'):
            self.kind = 'ds'; self.w = R[0]; self.r = set().union(*R[1:])
            if 'd16' in op: self.r |= R[0]
        elif op.startswith('ds_write'):
            self.kind = 'ds'; self.r = set().union(*R)
        elif op.startswith('buffer_load') or op.startswith('global_load'):
            self.kind = 'vmem'; self.w = R[0]; self.r = set().union(*R[1:])
        elif op.startswith('buffer_store') or op.startswith('global_store') or op.startswith('buffer_atomic'):
            self.kind = 'vmem'; self.r = set().union(*R); self.store = True
            self.wide = ('x4' in op or 'x3' in op); self.data = R[0]
        elif op.startswith('s_'):
            self.kind = 'salu'
            if op.startswith('s_cmp') or op.startswith('s_cbranch') or op in ('s_branch','s_barrier','s_waitcnt','s_endpgm','s_setprio'):
                self.r = set().union(*R) if R else set()
            else:
                self.w = R[0] if R else set(); self.r = set().union(*R[1:]) if len(R) > 1 else set()

def need(p, c):
    n = 0
    isv = lambda s: {x for x in s if x[0] in 'va'}
    iss = lambda s: {x for x in s if x[0] == 's'}
    if p.kind == 'valu':
        vw = isv(p.w); sw = iss(p.w)
        if c.kind == 'mfma' and vw & c.r: n = max(n, 2)
        if c.kind == 'valu':
            if vw & c.r:
                if p.trans and not c.trans: n = max(n, 1)
                if p.dot and not (c.op == p.op): n = max(n, 3)
                if p.dot and c.op == p.op: n = max(n, 3)
                if c.dpp: n = max(n, 2)
                if c.perml: n = max(n, 2)
                if c.rdl: n = max(n, 1)
            if p.dot and (vw & c.w) and c.op != p.op: n = max(n, 3)
            if sw & c.r: n = max(n, 2)
            if c.rdl and False: pass
        if c.kind in ('vmem','ds') and p.dot and vw & c.r: n = max(n, 3)
        if c.kind == 'vmem' and sw & c.r: n = max(n, 5)
        if c.kind == 'salu' and sw & c.r: n = max(n, 1)
    if p.kind == 'mfma':
        big = 12 if p.passes == 8 else 8
        if c.kind == 'mfma':
            if p.w & c.ab: n = max(n, big)
            if p.w & c.srcc and not (p.w == c.srcc and p.passes == c.passes): n = max(n, big - 2)
            if p.w & c.w and not (p.w == c.srcc): n = max(n, big)
        elif c.kind in ('valu','vmem','ds'):
            if p.w & (c.r | c.w): n = max(n, big)
            if c.kind == 'valu' and p.srcc & c.w: n = max(n, 7 if p.passes == 8 else 3)
    if p.kind == 'vmem' and getattr(p, 'store', False) and p.wide:
        if c.kind == 'valu' and p.data & c.w: n = max(n, 2)
        elif p.data & c.w: n = max(n, 1)
    return n

class Asm:
    def __init__(self):
        self.lines = []; self.hist = []
    def raw(self, s):
        self.lines.append(s)
    def label(self, name):
        self.lines.append(name + ':')
        self.hist = []
    def fence(self, n=15):
        self.e('s_nop %d' % n)
    def e(self, text, dotc=False):
        i = Inst(text)
        req = 0; dist = 0
        for p in reversed(self.hist):
            nd = need(p, i)
            if dotc and p.kind == 'valu' and p.dot and i.kind == 'valu' and i.op == p.op:
                srcc = parse_regs(i.ops[3]) if len(i.ops) > 3 else set()
                ab = parse_regs(i.ops[1]) | parse_regs(i.ops[2])
                if not (p.w & ab): nd = 0
            if nd - dist > req: req = nd - dist
            dist += p.ws
            if dist > 24: break
        while req > 0:
            k = min(req, 16)
            nop = Inst('s_nop %d' % (k-1)); self.lines.append('  s_nop %d' % (k-1)); self.hist.append(nop); req -= k
        self.lines.append('  ' + text); self.hist.append(i)
        if len(self.hist) > 40: self.hist = self.hist[-40:]
    def text(self):
        return '\n'.join(self.lines) + '\n'
```

```python
from asmlib import Asm
import struct, math
def f2u(x): return struct.unpack('<I', struct.pack('<f', x))[0]
def hx(x): return '0x%08x' % (x & 0xffffffff)
def fh(x): return hx(f2u(x))

X2  = 0x000000
H2  = 0x200000
HR  = 0x400000
KR  = 0x600000; KRS = 4224
ST  = 0x820000
KS  = 0x824000
WGU = 0x900000
WD  = 0xC00000
HF  = 0xE00000
WS_SIZE = 0x1400000

def srd(a, s, lo, hi, size):
    a.e(f's_mov_b32 s{s}, s{lo}')
    a.e(f's_and_b32 s{s+1}, s{hi}, 0xffff')
    a.e(f's_mov_b32 s{s+2}, {hx(size)}')
    a.e(f's_mov_b32 s{s+3}, 0x00020000')

def srd_ws(a, s, off, size, wslo=42, wshi=43):
    a.e(f's_add_u32 s{s}, s{wslo}, {hx(off)}')
    a.e(f's_addc_u32 s{s+1}, s{wshi}, 0')
    a.e(f's_and_b32 s{s+1}, s{s+1}, 0xffff')
    a.e(f's_mov_b32 s{s+2}, {hx(size)}')
    a.e(f's_mov_b32 s{s+3}, 0x00020000')

def load_kernargs(a):
    a.e('s_load_dwordx16 s[16:31], s[0:1], 0x0')
    a.e('s_load_dwordx8 s[32:39], s[0:1], 0x40')
    a.e('s_load_dwordx4 s[40:43], s[0:1], 0x60')

def allreduce64(a, regs, tmps, op='v_add_f32'):
    for mod in ('quad_perm:[1,0,3,2]', 'quad_perm:[2,3,0,1]', 'row_half_mirror', 'row_mirror'):
        for r in regs:
            a.e(f'{op}_dpp v{r}, v{r}, v{r} {mod} row_mask:0xf bank_mask:0xf')
    for sw in ('v_permlane16_swap_b32', 'v_permlane32_swap_b32'):
        for r, t in zip(regs, tmps): a.e(f'v_mov_b32 v{t}, v{r}')
        for r, t in zip(regs, tmps): a.e(f'{sw} v{r}, v{t}')
        for r, t in zip(regs, tmps): a.e(f'{op} v{r}, v{r}, v{t}')

def kd(name, vgpr, sgpr=100, accum=None):
    if accum is None: accum = (vgpr + 3)//4*4
    return f'''.section .rodata,"a"
.p2align 6
.amdhsa_kernel {name}
  .amdhsa_next_free_vgpr {vgpr}
  .amdhsa_next_free_sgpr {sgpr}
  .amdhsa_accum_offset {accum}
  .amdhsa_group_segment_fixed_size 0
  .amdhsa_kernarg_size 112
  .amdhsa_user_sgpr_count 2
  .amdhsa_user_sgpr_kernarg_segment_ptr 1
  .amdhsa_system_sgpr_workgroup_id_x 1
.end_amdhsa_kernel
.text
'''
def head(name):
    return f'''.globl {name}
.p2align 8
.type {name},@function
{name}:
'''
```

```python
from gen_common import *
LOG2E = 1.4426950408889634
def _split():
    m, e = math.frexp(LOG2E)
    hi = math.floor(m * 65536 + 0.5) / 65536 * 2**e
    lo = LOG2E - hi
    return hi, lo * math.log(2.0)
C_HI, C_LO2 = _split()

N_LN = 64; N_WG = 43; N_WD = 43; N_KG = 512
K1_GRID = N_LN + N_WG + N_WD + N_KG
K1_LDS = 96*544 + 2048

def gen_k1():
    a = Asm()
    a.raw(head('s4_prep_kernel'))
    load_kernargs(a)
    a.e(f's_cmp_ge_u32 s2, {K1_GRID}')
    a.e('s_cbranch_scc1 K1_END')
    a.e('v_and_b32 v1, 63, v0')
    a.e('v_lshrrev_b32 v2, 6, v0')
    a.e('s_waitcnt lgkmcnt(0)')
    a.e(f's_cmp_ge_u32 s2, {N_LN + N_WG + N_WD}')
    a.e('s_cbranch_scc1 K1_KGEN')
    a.e(f's_cmp_ge_u32 s2, {N_LN + N_WG}')
    a.e('s_cbranch_scc1 K1_WD')
    a.e(f's_cmp_ge_u32 s2, {N_LN}')
    a.e('s_cbranch_scc1 K1_WGU')
    srd(a, 44, 16, 17, 0x200000)
    srd_ws(a, 48, X2, 0x200000)
    srd_ws(a, 52, ST, 8192)
    a.e('s_lshl_b32 s56, s2, 15')
    a.e('v_lshlrev_b32 v3, 13, v2')
    a.e('v_lshl_add_u32 v3, v1, 4, v3')
    a.e('v_add_u32 v3, s56, v3')
    a.e('s_movk_i32 s57, 0x1000')
    D = 8
    for j in range(8):
        so = 's57' if j >= 4 else '0'
        a.e(f'buffer_load_dwordx4 v[{D+4*j}:{D+4*j+3}], v3, s[44:47], {so} offen offset:{(j%4)*1024}')
    a.e('s_mov_b32 s58, 0x3f803f80')
    a.e('s_mov_b32 s59, 0x00003f80')
    a.e('s_mov_b32 s60, 0x3f800000')
    a.e('s_mov_b32 s61, 0x0000ffff')
    a.e(f's_mov_b32 s62, {fh(1e-5)}')
    a.e('s_lshl_b32 s56, s2, 7')
    a.e('v_lshlrev_b32 v4, 15, v1')
    a.e('v_lshl_add_u32 v4, v2, 5, v4')
    a.e('v_add_u32 v4, s56, v4')
    a.e('v_lshlrev_b32 v5, 5, v2')
    a.e('v_add_u32 v5, s56, v5')
    a.e('s_waitcnt vmcnt(0)')
    T = 64
    for c in range(4):
        for j in range(8):
            a.e(f'v_mov_b32 v{T+8*c+j}, v{D+4*j+c}')
        a.e(f's_mov_b32 s63, {c*8192}')
        a.e(f'buffer_store_dwordx4 v[{T+8*c}:{T+8*c+3}], v4, s[48:51], s63 offen')
        a.e(f'buffer_store_dwordx4 v[{T+8*c+4}:{T+8*c+7}], v4, s[48:51], s63 offen offset:16')
    S = 40; TM = 48
    for c in range(4):
        for j in range(8):
            src = '0' if c == 0 else f'v{S+j}'
            a.e(f'v_dot2_f32_bf16 v{S+j}, v{D+4*j+c}, s58, {src}', dotc=True)
    allreduce64(a, [S+j for j in range(8)], [TM+j for j in range(8)])
    for j in range(8):
        a.e(f'v_mul_f32 v{S+j}, {fh(-1.0/512)}, v{S+j}')
    Q = 56; DD = 96
    for j in range(8): a.e(f'v_mov_b32 v{Q+j}, 0')
    for c in range(4):
        for j in range(8):
            a.e(f'v_dot2_f32_bf16 v{DD+2*j}, v{D+4*j+c}, s59, v{S+j}')
            a.e(f'v_dot2_f32_bf16 v{DD+2*j+1}, v{D+4*j+c}, s60, v{S+j}')
        for j in range(8):
            a.e(f'v_fmac_f32 v{Q+j}, v{DD+2*j}, v{DD+2*j}')
        for j in range(8):
            a.e(f'v_fmac_f32 v{Q+j}, v{DD+2*j+1}, v{DD+2*j+1}')
    allreduce64(a, [Q+j for j in range(8)], [TM+j for j in range(8)])
    O = 112
    for j in range(8): a.e(f'v_mul_f32 v{Q+j}, {fh(1.0/512)}, v{Q+j}')
    for j in range(8): a.e(f'v_cvt_pk_bf16_f32 v{S+j}, v{S+j}, v{Q+j}')
    for j in range(8): a.e(f'v_and_b32 v{Q+j}, 0xffff0000, v{S+j}')
    for j in range(8): a.e(f'v_add_f32 v{Q+j}, s62, v{Q+j}')
    for j in range(8): a.e(f'v_cvt_pk_bf16_f32 v{Q+j}, v{Q+j}, v{Q+j}')
    for j in range(8): a.e(f'v_and_b32 v{Q+j}, 0xffff0000, v{Q+j}')
    for j in range(8): a.e(f'v_sqrt_f32 v{Q+j}, v{Q+j}')
    for j in range(8): a.e(f'v_cvt_pk_bf16_f32 v{Q+j}, v{Q+j}, v{Q+j}')
    for j in range(8): a.e(f'v_bfi_b32 v{O+j}, s61, v{S+j}, v{Q+j}')
    a.e('s_mov_b64 exec, 1')
    a.e(f'buffer_store_dwordx4 v[{O}:{O+3}], v5, s[52:55], 0 offen')
    a.e(f'buffer_store_dwordx4 v[{O+4}:{O+7}], v5, s[52:55], 0 offen offset:16')
    a.e('s_endpgm')

    a.label('K1_WGU')
    srd(a, 44, 32, 33, 512*2752)
    srd(a, 48, 34, 35, 512*2752)
    srd_ws(a, 52, WGU, 172*16384)
    a.e(f's_sub_u32 s56, s2, {N_LN}')
    a.e('s_lshl_b32 s56, s56, 8')
    a.e('v_add_u32 v3, s56, v0')
    M = 12193
    assert all(((g*M) >> 21) == g//172 for g in range(11008))
    a.e(f'v_mul_u32_u24 v4, {M}, v3')
    a.e('v_lshrrev_b32 v4, 21, v4')
    a.e('v_mul_u32_u24 v5, 172, v4')
    a.e('v_sub_u32 v5, v3, v5')
    a.e(f'v_mul_u32_u24 v6, {8*2752}, v4')
    a.e('v_lshl_add_u32 v6, v5, 4, v6')
    G = 16; U = 48
    for j in range(8):
        a.e(f's_mov_b32 s57, {j*2752}')
        a.e(f'buffer_load_dwordx4 v[{G+4*j}:{G+4*j+3}], v6, s[44:47], s57 offen')
        a.e(f'buffer_load_dwordx4 v[{U+4*j}:{U+4*j+3}], v6, s[48:51], s57 offen')
    a.e('v_lshlrev_b32 v7, 14, v5')
    a.e('v_lshl_add_u32 v7, v4, 8, v7')
    a.e('s_mov_b32 s58, 0x05040100')
    a.e('s_mov_b32 s59, 0x07060302')
    a.e('s_waitcnt vmcnt(0)')
    O = 80
    k = 0
    for fi in range(8):
        for isup, B in ((0, G), (1, U)):
            o = O + 4*(k % 8); k += 1
            for kk in range(4):
                sel = 's59' if fi & 1 else 's58'
                a.e(f'v_perm_b32 v{o+kk}, v{B+4*(2*kk+1)+(fi>>1)}, v{B+4*(2*kk)+(fi>>1)}, {sel}')
            a.e(f'buffer_store_dwordx4 v[{o}:{o+3}], v7, s[52:55], 0 offen offset:{(2*fi+isup)*16}')
    a.e('s_endpgm')

    a.label('K1_WD')
    srd(a, 44, 36, 37, 1376*1024)
    srd_ws(a, 52, WD, 32*43*1024)
    a.e(f's_sub_u32 s56, s2, {N_LN + N_WG}')
    a.e('s_lshl_b32 s56, s56, 2')
    a.e('v_add_u32 v4, s56, v2')
    a.e('v_lshlrev_b32 v6, 13, v4')
    a.e('v_lshl_add_u32 v6, v1, 4, v6')
    a.e('s_movk_i32 s57, 0x1000')
    for j in range(8):
        so = 's57' if j >= 4 else '0'
        a.e(f'buffer_load_dwordx4 v[{G+4*j}:{G+4*j+3}], v6, s[44:47], {so} offen offset:{(j%4)*1024}')
    a.e('v_lshrrev_b32 v5, 1, v1')
    a.e(f'v_mul_u32_u24 v7, {43*1024}, v5')
    a.e('v_lshl_add_u32 v7, v4, 8, v7')
    a.e('v_and_b32 v5, 1, v1')
    a.e('v_lshl_add_u32 v7, v5, 7, v7')
    a.e('s_mov_b32 s58, 0x05040100')
    a.e('s_mov_b32 s59, 0x07060302')
    a.e('s_waitcnt vmcnt(0)')
    for i in range(8):
        o = O + 4*i
        for kk in range(4):
            sel = 's59' if i & 1 else 's58'
            a.e(f'v_perm_b32 v{o+kk}, v{G+4*(2*kk+1)+(i>>1)}, v{G+4*(2*kk)+(i>>1)}, {sel}')
        a.e(f'buffer_store_dwordx4 v[{o}:{o+3}], v7, s[52:55], 0 offen offset:{i*16}')
    a.e('s_endpgm')

    a.label('K1_KGEN')
    a.e(f's_sub_u32 s3, s2, {N_LN + N_WG + N_WD}')
    srd(a, 44, 18, 19, 131072)
    srd(a, 48, 20, 21, 131072)
    srd(a, 52, 22, 23, 131072)
    srd(a, 56, 24, 25, 131072)
    srd(a, 60, 26, 27, 1024)
    srd_ws(a, 64, KR, 512*KRS)
    srd_ws(a, 68, KS, 2048)
    a.e('v_and_b32 v3, 127, v0')
    a.e('v_lshrrev_b32 v4, 7, v0')
    a.e('s_lshl_b32 s72, s3, 8')
    a.e('v_lshlrev_b32 v5, 1, v3')
    a.e('v_lshlrev_b32 v6, 2, v1')
    a.e('s_lshl_b32 s73, s3, 1')
    a.e('v_mov_b32 v7, s73')
    a.e('buffer_load_ushort v10, v5, s[44:47], s72 offen')
    a.e('buffer_load_ushort v11, v5, s[48:51], s72 offen')
    a.e('buffer_load_ushort v12, v5, s[52:55], s72 offen')
    a.e('buffer_load_ushort v13, v5, s[56:59], s72 offen')
    a.e('buffer_load_dword v14, v6, s[52:55], s72 offen')
    a.e('buffer_load_dword v15, v6, s[56:59], s72 offen')
    a.e('buffer_load_ushort v16, v7, s[60:63], 0 offen')
    a.e('v_readfirstlane_b32 s74, v4')
    a.e(f's_mov_b32 s76, {fh(512.0)}')
    a.e(f's_mov_b32 s77, {fh(128.0)}')
    a.e(f's_mov_b32 s78, {fh(4.0)}')
    a.e(f's_mov_b32 s79, {fh(64.0)}')
    a.e('s_cmp_eq_u32 s74, 0')
    a.e(f's_cmov_b32 s76, 0')
    a.e(f's_cmov_b32 s77, {fh(32.0)}')
    a.e(f's_cmov_b32 s78, {fh(1.0)}')
    a.e(f's_cmov_b32 s79, {fh(16.0)}')
    a.e(f's_mov_b32 s80, {fh(C_HI)}')
    a.e(f's_mov_b32 s81, {fh(C_LO2)}')
    a.e('v_lshlrev_b32 v20, 2, v3')
    a.e(f'v_mul_u32_u24 v21, {16*544}, v4')
    a.e('v_add_u32 v21, v21, v20')
    a.e(f'v_mul_u32_u24 v22, {32*544}, v4')
    a.e('v_add_u32 v22, v22, v20')
    a.e('s_waitcnt vmcnt(0)')
    for r in (10, 11, 12, 13, 16): a.e(f'v_lshlrev_b32 v{r}, 16, v{r}')
    a.e('v_and_b32 v14, 0x7fff7fff, v14')
    a.e('v_and_b32 v15, 0x7fff7fff, v15')
    a.e('v_pk_max_u16 v14, v14, v15')
    a.e('v_lshrrev_b32 v15, 16, v14')
    a.e('v_and_b32 v14, 0xffff, v14')
    a.e('v_max_u32 v14, v14, v15')
    def expb(dst, x, t1, t2):
        a.e(f'v_mul_f32 v{t1}, s80, v{x}')
        a.e(f'v_mul_f32 v{t2}, s81, v{x}')
        a.e(f'v_exp_f32 v{t1}, v{t1}')
        a.e(f'v_fma_f32 v{t1}, v{t1}, v{t2}, v{t1}')
        a.e(f'v_cvt_pk_bf16_f32 v{t1}, v{t1}, v{t1}')
        a.e(f'v_and_b32 v{dst}, 0xffff0000, v{t1}')
    expb(16, 16, 24, 25)
    expb(10, 10, 26, 27)
    allreduce64(a, [14], [15], op='v_max_u32')
    a.e('v_lshrrev_b32 v14, 7, v14')
    a.e('v_max_u32 v14, 1, v14')
    a.e('v_min_u32 v14, 0xfd, v14')
    a.e('v_lshrrev_b32 v15, 23, v16')
    a.e('v_max_u32 v15, 1, v15')
    a.e('v_min_u32 v15, 0xfd, v15')
    a.e('v_sub_u32 v24, 254, v14')
    a.e('v_lshlrev_b32 v24, 23, v24')
    a.e('v_sub_u32 v25, 254, v15')
    a.e('v_lshlrev_b32 v25, 23, v25')
    a.e('v_lshlrev_b32 v14, 23, v14')
    a.e('v_lshlrev_b32 v15, 23, v15')
    a.e('v_mul_f32 v14, v14, v15')
    a.e('v_add_f32 v14, v14, v14')
    a.e('v_mul_f32 v12, v12, v24')
    a.e('v_mul_f32 v13, v13, v24')
    a.e('v_mul_f32 v25, v16, v25')
    a.e('v_mul_f32 v12, v12, v25')
    a.e('v_mul_f32 v13, v13, v25')
    a.e('v_mul_f32 v10, v10, v16')
    a.e(f'v_mul_f32 v10, {fh(-LOG2E)}, v10')
    a.e('v_mul_f32 v11, v11, v16')
    a.e(f'v_mul_f32 v11, {fh(1.0/(2*math.pi))}, v11')
    a.e('s_lshl_b32 s73, s3, 2')
    a.e('v_mov_b32 v7, s73')
    a.e('v_cmp_eq_u32 vcc, 0, v0')
    a.e('s_and_saveexec_b64 s[82:83], vcc')
    a.e('buffer_store_dword v14, v7, s[68:71], 0 offen')
    a.e('s_mov_b64 exec, s[82:83]')
    def cexp(dst, sp, conj, t):
        a.e(f'v_mul_f32 v{t}, s{sp}, v10')
        a.e(f'v_mul_f32 v{t+1}, s{sp}, v11')
        a.e(f'v_exp_f32 v{t}, v{t}')
        a.e(f'v_fract_f32 v{t+1}, v{t+1}')
        a.e(f'v_cos_f32 v{dst}, v{t+1}')
        a.e(f'v_sin_f32 v{dst+1}, v{t+1}')
        a.e(f'v_mul_f32 v{dst}, v{dst}, v{t}')
        if conj: a.e(f'v_mul_f32 v{dst+1}, v{dst+1}, -v{t}') if False else a.e(f'v_mul_f32_e64 v{dst+1}, v{dst+1}, -v{t}')
        else: a.e(f'v_mul_f32 v{dst+1}, v{dst+1}, v{t}')
    def cmul(x, w, t):
        a.e(f'v_pk_mul_f32 v[{t}:{t+1}], v[{x}:{x+1}], v[{w}:{w+1}] op_sel:[0,0] op_sel_hi:[0,1]')
        a.e(f'v_pk_fma_f32 v[{x}:{x+1}], v[{x}:{x+1}], v[{w}:{w+1}], v[{t}:{t+1}] op_sel:[1,1,0] op_sel_hi:[1,0,1] neg_lo:[0,1,0]')
    X = 30; YA = 32; YB = 34; WX = 36; WY = 38; T0 = 40
    cexp(X, 76, False, T0)
    cexp(WX, 77, False, T0+2)
    cexp(WY, 78, True, T0+4)
    cexp(YB, 79, True, T0+6)
    cmul(X, 12, T0)
    a.e(f'v_mov_b32 v{YA}, 1.0')
    a.e(f'v_mov_b32 v{YA+1}, 0')
    P = 50
    for r in range(16):
        p = P + 3*(r % 2)
        a.e(f'v_cvt_pk_f16_f32 v{p}, v{X}, v{X+1}')
        a.e(f'v_cvt_pk_f16_f32 v{p+1}, v{YA}, v{YA+1}')
        a.e(f'v_cvt_pk_f16_f32 v{p+2}, v{YB}, v{YB+1}')
        a.e(f'ds_write_b32 v21, v{p} offset:{r*544}')
        a.e(f'ds_write_b32 v22, v{p+1} offset:{32*544 + r*544}')
        a.e(f'ds_write_b32 v22, v{p+2} offset:{32*544 + (16+r)*544}')
        if r < 15:
            cmul(X, WX, T0); cmul(YA, WY, T0+2); cmul(YB, WY, T0+4)
    a.e('v_and_b32 v3, 15, v1')
    a.e('v_lshrrev_b32 v4, 4, v1')
    a.e('v_lshrrev_b32 v5, 1, v2')
    a.e('v_and_b32 v6, 1, v2')
    a.e('v_mul_u32_u24 v7, 544, v3')
    a.e('v_lshl_add_u32 v7, v4, 4, v7')
    a.e(f'v_mul_u32_u24 v8, {32*544}, v5')
    a.e(f'v_mul_u32_u24 v9, {16*544}, v6')
    a.e('v_add3_u32 v8, v8, v9, v7')
    a.e(f'v_mul_u32_u24 v9, {16*544}, v5')
    a.e('v_add_u32 v9, v9, v7')
    a.e('v_lshlrev_b32 v20, 10, v5')
    a.e('v_lshl_add_u32 v20, v3, 6, v20')
    a.e('v_lshl_add_u32 v20, v6, 5, v20')
    a.e('v_lshl_add_u32 v20, v4, 3, v20')
    a.e('s_waitcnt lgkmcnt(0)')
    a.e('s_barrier')
    FA = 64; FB = 96; AC = 60
    for ks in range(8):
        a.e(f'ds_read_b128 v[{FA+4*ks}:{FA+4*ks+3}], v8 offset:{32*544 + 64*ks}')
        a.e(f'ds_read_b128 v[{FB+4*ks}:{FB+4*ks+3}], v9 offset:{64*ks}')
    for ks in range(8):
        a.e(f's_waitcnt lgkmcnt({14-2*ks})')
        src = '0' if ks == 0 else f'v[{AC}:{AC+3}]'
        a.e(f'v_mfma_f32_16x16x32_f16 v[{AC}:{AC+3}], v[{FA+4*ks}:{FA+4*ks+3}], v[{FB+4*ks}:{FB+4*ks+3}], {src}')
    a.e('v_lshlrev_b32 v21, 3, v0')
    a.e('v_sub_u32 v21, 2047, v21')
    I = 30
    for i in range(8):
        a.e(f'v_subrev_u32 v{I+i}, {i}, v21')
    for i in range(8): a.e(f'v_cvt_f32_u32 v{I+i}, v{I+i}')
    for i in range(0, 8, 2): a.e(f'v_cvt_pk_bf16_f32 v{40+i//2}, v{I+i}, v{I+i+1}')
    for i in range(0, 8, 2):
        a.e(f'v_lshlrev_b32 v{I+i}, 16, v{40+i//2}')
        a.e(f'v_and_b32 v{I+i+1}, 0xffff0000, v{40+i//2}')
    for i in range(8): a.e(f'v_cvt_u32_f32 v{I+i}, v{I+i}')
    for i in range(8):
        a.e(f'v_lshrrev_b32 v{40+i}, 2, v{I+i}')
        a.e(f'v_add_u32 v{40+i}, 384, v{40+i}')
        a.e(f'v_min_u32 v{I+i}, v{I+i}, v{40+i}')
        a.e(f'v_lshlrev_b32 v{I+i}, 1, v{I+i}')
    a.e(f'v_cvt_pk_f16_f32 v50, v{AC}, v{AC+1}')
    a.e(f'v_cvt_pk_f16_f32 v51, v{AC+2}, v{AC+3}')
    TB = 96*544
    a.e(f'ds_write_b64 v20, v[50:51] offset:{TB}')
    a.e('s_waitcnt lgkmcnt(0)')
    a.e('s_barrier')
    for i in range(8):
        a.e(f'ds_read_u16 v{40+i}, v{I+i} offset:{TB}')
    a.e(f's_mul_i32 s72, s3, {KRS}')
    a.e('v_lshlrev_b32 v21, 4, v0')
    for k in range(4): a.e(f'v_mov_b32 v{56+k}, 0')
    a.e('s_waitcnt lgkmcnt(0)')
    for k in range(4): a.e(f'v_lshl_or_b32 v{52+k}, v{41+2*k}, 16, v{40+2*k}')
    a.e('buffer_store_dwordx4 v[52:55], v21, s[64:67], s72 offen')
    a.e('v_cmp_gt_u32 vcc, 8, v0')
    a.e('s_and_saveexec_b64 s[82:83], vcc')
    a.e('s_cbranch_execz K1_END')
    a.e('v_add_u32 v21, 4096, v21')
    a.e('buffer_store_dwordx4 v[56:59], v21, s[64:67], s72 offen')
    a.label('K1_END')
    a.e('s_endpgm')
    a.raw(kd('s4_prep_kernel', 128))
    return a.text()
if __name__ == '__main__':
    print(gen_k1())
```

```python
from gen_common import *
K2_GRID = 256
CH = 40960; KCS = 4160; UB = 33280
K2_LDS = 2*CH
def gen_k2():
    a = Asm()
    a.raw(head('s4_conv_kernel'))
    load_kernargs(a)
    a.e(f's_cmp_ge_u32 s2, {K2_GRID}')
    a.e('s_cbranch_scc1 K2_END')
    a.e('v_and_b32 v1, 63, v0')
    a.e('v_lshrrev_b32 v2, 6, v0')
    a.e('s_waitcnt lgkmcnt(0)')
    srd_ws(a, 44, X2, 0x200000)
    srd_ws(a, 48, ST, 8192)
    srd_ws(a, 52, KR, 512*KRS)
    srd_ws(a, 56, KS, 2048)
    srd(a, 60, 28, 29, 1024)
    srd_ws(a, 64, H2, 0x200000)
    a.e('s_lshl_b32 s68, s2, 13')
    a.e(f's_mul_i32 s69, s2, {2*KRS}')
    a.e(f's_add_u32 s70, s69, {KRS}')
    a.e('s_lshl_b32 s71, s2, 3')
    a.e('s_lshl_b32 s72, s2, 2')
    a.e('v_lshlrev_b32 v3, 5, v0')
    a.e('v_lshlrev_b32 v4, 4, v0')
    a.e('v_mov_b32 v5, 0')
    a.e(f'v_add_u32 v92, {CH}, v4')
    XR = 8; SR = 16; KA = [24, 40]; KE = 56
    a.e(f'buffer_load_dwordx4 v[{XR}:{XR+3}], v3, s[44:47], s68 offen')
    a.e(f'buffer_load_dwordx4 v[{XR+4}:{XR+7}], v3, s[44:47], s68 offen offset:16')
    a.e(f'buffer_load_dwordx4 v[{SR}:{SR+3}], v3, s[48:51], 0 offen')
    a.e(f'buffer_load_dwordx4 v[{SR+4}:{SR+7}], v3, s[48:51], 0 offen offset:16')
    for c in range(2):
        so = 's69' if c == 0 else 's70'
        for k, off in enumerate((0, 16, 4, 20)):
            a.e(f'buffer_load_dwordx4 v[{KA[c]+4*k}:{KA[c]+4*k+3}], v4, s[52:55], {so} offen offset:{off}')
    a.e('v_and_b32 v6, 3, v0')
    a.e('v_bfe_u32 v7, v0, 2, 1')
    a.e(f'v_mul_u32_u24 v72, {KRS}, v7')
    a.e('v_lshl_add_u32 v72, v6, 4, v72')
    a.e('v_add_u32 v72, 4096, v72')
    for k, off in enumerate((0, 16, 4, 20)):
        a.e(f'buffer_load_dwordx4 v[{KE+4*k}:{KE+4*k+3}], v72, s[52:55], s69 offen offset:{off}')
    a.e('buffer_load_dwordx2 v[74:75], v5, s[56:59], s71 offen')
    a.e('buffer_load_dword v76, v5, s[60:63], s72 offen')
    a.e(f'v_mul_u32_u24 v73, {CH}, v7')
    a.e('v_lshl_add_u32 v73, v6, 4, v73')
    a.e('v_add_u32 v73, 4096, v73')
    for k in range(4): a.e(f'v_mov_b32 v{80+k}, 0')
    a.e('v_cmp_gt_u32 vcc, 160, v0')
    a.e('s_and_saveexec_b64 s[82:83], vcc')
    a.e(f'ds_write_b128 v4, v[80:83] offset:{UB}')
    a.e(f'ds_write_b128 v92, v[80:83] offset:{UB}')
    a.e('s_mov_b64 exec, s[82:83]')
    a.e('s_mov_b32 s73, 0x00003f80')
    a.e('s_mov_b32 s74, 0x3f800000')
    a.e('v_lshrrev_b32 v77, 2, v0')
    a.e('v_mul_u32_u24 v77, 80, v77')
    a.e('v_lshl_add_u32 v77, v6, 4, v77')
    a.e(f'v_add_u32 v93, {CH}, v77')
    a.e('s_waitcnt vmcnt(14)')
    UBF = 84; T = 96
    for l in range(8):
        a.e(f'v_lshlrev_b32 v{T+l}, 16, v{SR+l}')
        a.e(f'v_and_b32 v{T+8+l}, 0xffff0000, v{SR+l}')
    for l in range(8): a.e(f'v_rcp_f32 v{T+8+l}, v{T+8+l}')
    for l in range(8):
        a.e(f'v_dot2_f32_bf16 v{T+16+2*l}, v{XR+l}, s73, v{T+l}')
        a.e(f'v_dot2_f32_bf16 v{T+17+2*l}, v{XR+l}, s74, v{T+l}')
    for l in range(8): a.e(f'v_cvt_pk_bf16_f32 v{T+l}, v{T+16+2*l}, v{T+17+2*l}')
    for l in range(8):
        a.e(f'v_lshlrev_b32 v{T+16+2*l}, 16, v{T+l}')
        a.e(f'v_and_b32 v{T+17+2*l}, 0xffff0000, v{T+l}')
    for l in range(8):
        a.e(f'v_mul_f32 v{T+16+2*l}, v{T+16+2*l}, v{T+8+l}')
        a.e(f'v_mul_f32 v{T+17+2*l}, v{T+17+2*l}, v{T+8+l}')
    for l in range(8): a.e(f'v_cvt_pk_bf16_f32 v{UBF+l}, v{T+16+2*l}, v{T+17+2*l}')
    for l in range(8):
        a.e(f'v_lshlrev_b32 v{T+16+2*l}, 16, v{UBF+l}')
        a.e(f'v_and_b32 v{T+17+2*l}, 0xffff0000, v{UBF+l}')
    for c in range(2):
        for k in range(4):
            a.e(f'v_cvt_pk_f16_f32 v{T+4*c+k}, v{T+16+4*k+c}, v{T+18+4*k+c}')
    a.e(f'ds_write_b128 v77, v[{T}:{T+3}] offset:{UB+32*80}')
    a.e(f'ds_write_b128 v93, v[{T+4}:{T+7}] offset:{UB+32*80}')
    def copies(base, vaddr, off0, tmp):
        A = base; B = base + 8
        for k in range(6):
            a.e(f'v_alignbit_b32 v{tmp+k}, v{A+k+1}, v{A+k}, 16')
            a.e(f'v_alignbit_b32 v{tmp+6+k}, v{B+k+1}, v{B+k}, 16')
        src = {0: A, 4: A+2, 2: B, 6: B+2, 1: tmp, 5: tmp+2, 3: tmp+6, 7: tmp+8}
        for s in (0, 4, 2, 6, 1, 5, 3, 7):
            a.e(f'ds_write_b128 v{vaddr}, v[{src[s]}:{src[s]+3}] offset:{off0 + s*KCS}')
    a.e('s_waitcnt vmcnt(10)')
    copies(KA[0], 4, 0, 128)
    a.e('s_waitcnt vmcnt(6)')
    copies(KA[1], 92, 0, 140)
    a.e('s_waitcnt vmcnt(2)')
    a.e('v_cmp_gt_u32 vcc, 8, v0')
    a.e('s_and_saveexec_b64 s[82:83], vcc')
    copies(KE, 73, 0, 152)
    a.e('s_mov_b64 exec, s[82:83]')
    a.e('s_waitcnt lgkmcnt(0)')
    a.e('v_and_b32 v6, 31, v1')
    a.e('v_lshrrev_b32 v7, 5, v1')
    a.e('v_lshrrev_b32 v24, 1, v2')
    a.e('v_and_b32 v25, 1, v2')
    a.e('v_and_b32 v26, 7, v6')
    a.e('v_sub_u32 v26, 7, v26')
    a.e(f'v_mul_u32_u24 v26, {KCS}, v26')
    a.e('v_lshrrev_b32 v27, 3, v6')
    a.e('v_sub_u32 v27, 3, v27')
    a.e('v_add_u32 v27, v27, v7')
    a.e('v_lshl_add_u32 v26, v27, 4, v26')
    a.e(f'v_mul_u32_u24 v28, {CH}, v24')
    a.e('v_sub_u32 v29, 1, v25')
    a.e('v_lshl_add_u32 v26, v29, 6, v26')
    a.e('v_add_u32 v26, v26, v28')
    a.e('v_mul_u32_u24 v30, 80, v6')
    a.e('v_lshl_add_u32 v30, v7, 4, v30')
    a.e('v_mul_u32_u24 v29, 80, v29')
    a.e('v_add3_u32 v30, v30, v29, v28')
    a.e('v_mul_u32_u24 v31, 144, v6')
    a.e('v_lshl_add_u32 v31, v7, 4, v31')
    a.e('v_mul_u32_u24 v29, 9216, v25')
    a.e('v_add3_u32 v31, v31, v29, v28')
    a.e('s_waitcnt lgkmcnt(0)')
    a.e('s_barrier')
    ACC0 = 128; ACC1 = 144; F = [160, 192]
    def rd(i, k):
        base = F[i % 2] + 4*k
        dst = f'v[{base}:{base+3}]'
        h = k // 4; kk = k % 4
        if kk == 0:   a.e(f'ds_read_b128 {dst}, v26 offset:{32*(126-4*i+h)-64}')
        elif kk == 1: a.e(f'ds_read_b128 {dst}, v30 offset:{UB + (31-2*i)*80 + 32*h}')
        elif kk == 2: a.e(f'ds_read_b128 {dst}, v30 offset:{UB + (63-2*i)*80 + 32*h}')
        else:         a.e(f'ds_read_b128 {dst}, v26 offset:{32*(62-4*i+h)-64}')
    def fr(i, k):
        base = F[i % 2] + 4*k
        return f'v[{base}:{base+3}]'
    for k in range(8): rd(0, k)
    for i in range(16):
        last = (i == 15)
        waits = [6, 7, 8, 8, 9, 8] if not last else [6, 5, 4, 2, 1, 0]
        mf = [(ACC0, 0, 1), (ACC1, 0, 2), (ACC1, 3, 1), (ACC0, 4, 5), (ACC1, 4, 6), (ACC1, 7, 5)]
        for j, (acc, ka, kb) in enumerate(mf):
            a.e(f's_waitcnt lgkmcnt({waits[j]})')
            first = (i == 0 and j < 2)
            src = '0' if first else f'v[{acc}:{acc+15}]'
            a.e(f'v_mfma_f32_32x32x16_f16 v[{acc}:{acc+15}], {fr(i,ka)}, {fr(i,kb)}, {src}')
            if not last and j < 4:
                rd(i+1, 2*j); rd(i+1, 2*j+1)
    a.e('s_barrier')
    for cg, acc in ((0, ACC0), (1, ACC1)):
        for i4 in range(4):
            a.e(f'ds_write_b128 v31, v[{acc+4*i4}:{acc+4*i4+3}] offset:{cg*4608 + 32*i4}')
    a.e('v_lshrrev_b32 v6, 2, v0')
    a.e('v_mul_u32_u24 v6, 144, v6')
    a.e('v_and_b32 v7, 3, v0')
    a.e('v_lshl_add_u32 v6, v7, 5, v6')
    a.e('s_waitcnt vmcnt(0)')
    a.e('v_lshlrev_b32 v78, 16, v76')
    a.e('v_and_b32 v79, 0xffff0000, v76')
    a.e('s_waitcnt lgkmcnt(0)')
    a.e('s_barrier')
    PR = 160
    for c in range(2):
        for p in range(2):
            for hh in range(2):
                r = PR + 16*c + 8*p + 4*hh
                a.e(f'ds_read_b128 v[{r}:{r+3}], v6 offset:{c*CH + p*9216 + 16*hh}')
    W = 96
    for l in range(8):
        a.e(f'v_lshlrev_b32 v{W+2*l}, 16, v{UBF+l}')
        a.e(f'v_and_b32 v{W+2*l+1}, 0xffff0000, v{UBF+l}')
    for l in range(8):
        a.e(f'v_mul_f32 v{W+2*l}, v{W+2*l}, v78')
        a.e(f'v_mul_f32 v{W+2*l+1}, v{W+2*l+1}, v79')
    for l in range(8): a.e(f'v_cvt_pk_bf16_f32 v{W+16+l}, v{W+2*l}, v{W+2*l+1}')
    for l in range(8):
        a.e(f'v_lshlrev_b32 v{W+2*l}, 16, v{W+16+l}')
        a.e(f'v_and_b32 v{W+2*l+1}, 0xffff0000, v{W+16+l}')
    a.e('s_waitcnt lgkmcnt(0)')
    for c in range(2):
        for l in range(8):
            a.e(f'v_add_f32 v{PR+16*c+l}, v{PR+16*c+l}, v{PR+16*c+8+l}')
        for l in range(8):
            a.e(f'v_mul_f32 v{PR+16*c+l}, v{PR+16*c+l}, v{74+c}')
    for l in range(8): a.e(f'v_cvt_pk_bf16_f32 v{W+16+l}, v{PR+l}, v{PR+16+l}')
    for l in range(8):
        a.e(f'v_lshlrev_b32 v{PR+2*l}, 16, v{W+16+l}')
        a.e(f'v_and_b32 v{PR+2*l+1}, 0xffff0000, v{W+16+l}')
    for l in range(16): a.e(f'v_add_f32 v{W+l}, v{W+l}, v{PR+l}')
    for l in range(8): a.e(f'v_cvt_pk_bf16_f32 v{W+16+l}, v{W+2*l}, v{W+2*l+1}')
    for l in range(8):
        a.e(f'v_lshlrev_b32 v{W+2*l}, 16, v{W+16+l}')
        a.e(f'v_and_b32 v{W+2*l+1}, 0xffff0000, v{W+16+l}')
        a.e(f'v_lshlrev_b32 v{PR+2*l}, 16, v{XR+l}')
        a.e(f'v_and_b32 v{PR+2*l+1}, 0xffff0000, v{XR+l}')
    for l in range(16): a.e(f'v_add_f32 v{W+l}, v{W+l}, v{PR+l}')
    for l in range(8): a.e(f'v_cvt_pk_bf16_f32 v{W+16+l}, v{W+2*l}, v{W+2*l+1}')
    a.e(f'buffer_store_dwordx4 v[{W+16}:{W+19}], v3, s[64:67], s68 offen')
    a.e(f'buffer_store_dwordx4 v[{W+20}:{W+23}], v3, s[64:67], s68 offen offset:16')
    a.label('K2_END')
    a.e('s_endpgm')
    a.raw(kd('s4_conv_kernel', 224))
    return a.text()
if __name__ == '__main__':
    print(gen_k2())
```

```python
from gen_common import *
K3_GRID = 256
XA = 1088; XB = 4384; XSZ = 32*XB
RED1 = XSZ; RED2 = XSZ + 4096
K3_LDS = XSZ + 8192
def gen_k3():
    a = Asm()
    a.raw(head('s4_gemm1_kernel'))
    load_kernargs(a)
    a.e(f's_cmp_ge_u32 s2, {K3_GRID}')
    a.e('s_cbranch_scc1 K3_END')
    a.e('v_and_b32 v1, 63, v0')
    a.e('v_lshrrev_b32 v2, 6, v0')
    a.e('s_nop 0')
    a.e('v_readfirstlane_b32 s3, v2')
    a.e('s_and_b32 s4, s2, 7')
    a.e('s_lshr_b32 s5, s2, 3')
    a.e('s_and_b32 s6, s4, 1')
    a.e('s_lshl_b32 s6, s6, 3')
    a.e('s_and_b32 s7, s5, 7')
    a.e('s_add_u32 s6, s6, s7')
    a.e('s_lshr_b32 s7, s4, 1')
    a.e('s_lshl_b32 s7, s7, 2')
    a.e('s_lshr_b32 s8, s5, 3')
    a.e('s_add_u32 s7, s7, s8')
    a.e('s_mul_i32 s8, s7, 11')
    a.e('s_mul_i32 s9, s7, 10')
    a.e('s_add_u32 s9, s9, 12')
    a.e('s_min_u32 s8, s8, s9')
    a.e('s_cmp_lt_u32 s7, 12')
    a.e('s_cselect_b32 s9, 3, 2')
    a.e('s_add_u32 s10, s8, s3')
    a.e('s_add_u32 s11, s10, 8')
    a.e('s_waitcnt lgkmcnt(0)')
    srd_ws(a, 44, H2, 0x200000)
    srd_ws(a, 48, WGU, 172*16384)
    srd_ws(a, 52, HR, 0x200000)
    srd_ws(a, 56, HF, 128*172*256)
    a.e('v_and_b32 v3, 31, v1')
    a.e('v_lshrrev_b32 v4, 5, v1')
    a.e('v_lshl_add_u32 v5, v2, 1, v4')
    a.e('v_lshlrev_b32 v6, 15, v5')
    a.e('v_lshl_add_u32 v6, v3, 4, v6')
    a.e('s_lshl_b32 s12, s6, 9')
    a.e('v_add_u32 v6, s12, v6')
    a.e('v_lshlrev_b32 v7, 4, v1')
    HV = 64
    for i in range(4):
        for c in range(4):
            a.e(f's_mov_b32 s13, {i*524288 + c*8192}')
            r = HV + 16*i + 4*c
            a.e(f'buffer_load_dwordx4 v[{r}:{r+3}], v6, s[44:47], s13 offen')
    a.e('s_lshl_b32 s14, s10, 14')
    for k4 in range(4):
        for k in range(4):
            r = 4*(4*k4+k)
            a.e(f'buffer_load_dwordx4 a[{r}:{r+3}], v7, s[48:51], s14 offen offset:{k*1024}')
        if k4 < 3: a.e('s_add_u32 s14, s14, 4096')
    a.e('s_mov_b32 s60, 0x3f803f80')
    a.e('s_mov_b32 s61, 0x00003f80')
    a.e('s_mov_b32 s62, 0x3f800000')
    a.e(f's_mov_b32 s63, {fh(1e-5)}')
    a.e('s_cmp_lt_u32 s3, s9')
    a.e('s_cbranch_scc1 K3_TWO')
    body(a, 1)
    a.label('K3_TWO')
    a.e('s_lshl_b32 s14, s11, 14')
    for k4 in range(4):
        for k in range(4):
            r = 64 + 4*(4*k4+k)
            a.e(f'buffer_load_dwordx4 a[{r}:{r+3}], v7, s[48:51], s14 offen offset:{k*1024}')
        if k4 < 3: a.e('s_add_u32 s14, s14, 4096')
    body(a, 2)
    a.label('K3_END')
    a.e('s_endpgm')
    a.raw(kd('s4_gemm1_kernel', 256, accum=128))
    return a.text()

def body(a, nt):
    HV = 64; tag = f'N{nt}'
    S = 8; TM = 12; RB = 16
    a.e('v_lshlrev_b32 v48, 4, v3')
    a.e('v_lshl_add_u32 v49, v2, 9, v48')
    a.e(f's_waitcnt vmcnt({16*nt})')
    for i in range(4):
        for c in range(4):
            for e in range(4):
                src = '0' if (i == 0 and c == 0) else f'v{S+e}'
                a.e(f'v_dot2_f32_bf16 v{S+e}, v{HV+16*i+4*c+e}, s60, {src}', dotc=True)
    def xreduce(R, red):
        for e in range(4): a.e(f'v_mov_b32 v{TM+e}, v{R+e}')
        for e in range(4): a.e(f'v_permlane32_swap_b32 v{R+e}, v{TM+e}')
        for e in range(4): a.e(f'v_add_f32 v{R+e}, v{R+e}, v{TM+e}')
        a.e(f'v_add_u32 v50, {red}, v49')
        a.e(f'v_add_u32 v51, {red}, v48')
        a.e(f'ds_write_b128 v50, v[{R}:{R+3}]')
        a.e('s_waitcnt lgkmcnt(0)')
        a.e('s_barrier')
        for w in range(8):
            a.e(f'ds_read_b128 v[{RB+4*w}:{RB+4*w+3}], v51 offset:{512*w}')
        a.e('s_waitcnt lgkmcnt(0)')
        for st in (16, 8, 4):
            for k in range(st):
                a.e(f'v_add_f32 v{RB+k}, v{RB+k}, v{RB+k+st}')
        for e in range(4): a.e(f'v_mov_b32 v{R+e}, v{RB+e}')
    xreduce(S, RED1)
    NM = 52; DL = 56
    for e in range(4): a.e(f'v_mul_f32 v{S+e}, {fh(-1.0/512)}, v{S+e}')
    for e in range(0, 4, 2): a.e(f'v_cvt_pk_bf16_f32 v{TM+e}, v{S+e}, v{S+e+1}')
    for e in range(0, 4, 2):
        a.e(f'v_lshlrev_b32 v{NM+e}, 16, v{TM+e}')
        a.e(f'v_and_b32 v{NM+e+1}, 0xffff0000, v{TM+e}')
    for e in range(4): a.e(f'v_sub_f32 v{DL+e}, v{NM+e}, v{S+e}')
    a.e('s_lshr_b32 s14, s3, 1')
    a.e('s_and_b32 s15, s7, 3')
    a.e('s_cmp_lg_u32 s14, s15')
    a.e(f's_cbranch_scc1 K3_NOHR_{tag}')
    a.e('s_lshr_b32 s14, s7, 2')
    for i in range(4):
        if i < 3:
            a.e(f's_cmp_lg_u32 s14, {i}')
            a.e(f's_cbranch_scc1 K3_HR{i+1}_{tag}')
        for e in range(4):
            for c in range(4):
                a.e(f'v_mov_b32 v{RB+4*e+c}, v{HV+16*i+4*c+e}')
        if i < 3:
            a.e(f's_branch K3_HRS_{tag}')
            a.label(f'K3_HR{i+1}_{tag}')
    a.label(f'K3_HRS_{tag}')
    a.e('v_lshlrev_b32 v50, 12, v3')
    a.e('v_lshl_add_u32 v50, v5, 4, v50')
    a.e('s_lshl_b32 s15, s6, 17')
    a.e('s_lshl_b32 s14, s14, 8')
    a.e('s_add_u32 s15, s15, s14')
    for e in range(4):
        a.e(f'buffer_store_dwordx4 v[{RB+4*e}:{RB+4*e+3}], v50, s[52:55], s15 offen offset:{1024*e}')
    a.label(f'K3_NOHR_{tag}')
    a.e('s_nop 1')
    Q2 = 8
    DT = 16
    for k in range(8): a.e(f'v_mov_b32 v{Q2+k}, 0')
    for i in range(4):
        for c2 in range(2):
            idx = [(c, e) for c in (2*c2, 2*c2+1) for e in range(4)]
            for k, (c, e) in enumerate(idx):
                r = HV+16*i+4*c+e
                a.e(f'v_dot2_f32_bf16 v{DT+2*k}, v{r}, s61, v{NM+e}')
                a.e(f'v_dot2_f32_bf16 v{DT+2*k+1}, v{r}, s62, v{NM+e}')
            for k, (c, e) in enumerate(idx):
                r = HV+16*i+4*c+e
                a.e(f'v_pk_fma_f32 v[{Q2+2*e}:{Q2+2*e+1}], v[{DT+2*k}:{DT+2*k+1}], v[{DT+2*k}:{DT+2*k+1}], v[{Q2+2*e}:{Q2+2*e+1}]')
                a.e(f'v_cvt_pk_bf16_f32 v{r}, v{DT+2*k}, v{DT+2*k+1}')
    Q = 60
    for e in range(4): a.e(f'v_add_f32 v{Q+e}, v{Q2+2*e}, v{Q2+2*e+1}')
    xreduce(Q, RED2)
    RS = 8
    for e in range(4): a.e(f'v_mul_f32 v{DL+e}, v{DL+e}, v{DL+e}')
    for e in range(4): a.e(f'v_fma_f32 v{Q+e}, v{Q+e}, s64, -v{DL+e}') if False else None
    a.e(f's_mov_b32 s64, {fh(1.0/512)}')
    for e in range(4): a.e(f'v_fma_f32 v{Q+e}, v{Q+e}, s64, -v{DL+e}')
    for e in range(4): a.e(f'v_max_f32 v{Q+e}, 0, v{Q+e}')
    for e in range(4): a.e(f'v_cvt_pk_bf16_f32 v{Q+e}, v{Q+e}, v{Q+e}')
    for e in range(4): a.e(f'v_and_b32 v{Q+e}, 0xffff0000, v{Q+e}')
    for e in range(4): a.e(f'v_add_f32 v{Q+e}, s63, v{Q+e}')
    for e in range(4): a.e(f'v_cvt_pk_bf16_f32 v{Q+e}, v{Q+e}, v{Q+e}')
    for e in range(4): a.e(f'v_and_b32 v{Q+e}, 0xffff0000, v{Q+e}')
    for e in range(4): a.e(f'v_sqrt_f32 v{Q+e}, v{Q+e}')
    for e in range(4): a.e(f'v_cvt_pk_bf16_f32 v{Q+e}, v{Q+e}, v{Q+e}')
    for e in range(4): a.e(f'v_and_b32 v{Q+e}, 0xffff0000, v{Q+e}')
    for e in range(4): a.e(f'v_rcp_f32 v{RS+2*e}, v{Q+e}')
    a.e(f'v_mul_u32_u24 v50, {XB}, v3')
    a.e('v_lshl_add_u32 v50, v5, 4, v50')
    OUT = 32
    for i in range(4):
        for e in range(4):
            o = OUT + 4*((4*i+e) % 4)
            for c in range(4):
                r = HV+16*i+4*c+e
                a.e(f'v_lshlrev_b32 v{DT+2*c}, 16, v{r}')
                a.e(f'v_and_b32 v{DT+2*c+1}, 0xffff0000, v{r}')
            for c in range(4):
                a.e(f'v_pk_mul_f32 v[{DT+2*c}:{DT+2*c+1}], v[{DT+2*c}:{DT+2*c+1}], v[{RS+2*e}:{RS+2*e+1}] op_sel:[0,0] op_sel_hi:[1,0]')
            for c in range(4):
                a.e(f'v_cvt_pk_bf16_f32 v{o+c}, v{DT+2*c}, v{DT+2*c+1}')
            a.e(f'ds_write_b128 v50, v[{o}:{o+3}] offset:{e*XA + 256*i}')
    a.e('v_and_b32 v3, 15, v1')
    a.e('v_lshrrev_b32 v4, 4, v1')
    a.e('v_and_b32 v5, 3, v3')
    a.e(f'v_mul_u32_u24 v5, {XA}, v5')
    a.e('v_lshrrev_b32 v6, 2, v3')
    a.e(f'v_mul_u32_u24 v6, {XB}, v6')
    a.e('v_add_u32 v5, v5, v6')
    a.e('v_lshl_add_u32 v28, v4, 4, v5')
    a.e(f'v_add_u32 v29, {4*4*XB}, v28')
    a.e('v_lshlrev_b32 v30, 4, v3')
    a.e('v_lshl_add_u32 v30, v4, 2, v30')
    a.e('s_waitcnt lgkmcnt(0)')
    a.e('s_barrier')
    XF = 32; ACC = 64
    def rdgrp(ks, g):
        for k in range(4):
            r = XF + 16*g + 4*k
            a.e(f'ds_read_b128 v[{r}:{r+3}], v{28+g} offset:{k*4*XB + 64*ks}')
    def mfgrp(ks, g):
        for k in range(4):
            lam = 4*g + k
            for t in range(nt):
                acc = ACC + 32*t + 4*lam
                src = '0' if ks == 0 else f'v[{acc}:{acc+3}]'
                a.e(f'v_mfma_f32_16x16x32_bf16 v[{acc}:{acc+3}], a[{64*t+4*ks}:{64*t+4*ks+3}], v[{XF+16*g+4*k}:{XF+16*g+4*k+3}], {src}')
    rdgrp(0, 0)
    for ks in range(16):
        rdgrp(ks, 1)
        if ks == 0: a.e('s_waitcnt vmcnt(0)')
        a.e('s_waitcnt lgkmcnt(4)')
        mfgrp(ks, 0)
        if ks < 15:
            rdgrp(ks+1, 0)
            a.e('s_waitcnt lgkmcnt(4)')
        else:
            a.e('s_waitcnt lgkmcnt(0)')
        mfgrp(ks, 1)
    for t in range(nt):
        ts = 's10' if t == 0 else 's11'
        a.e('s_mul_i32 s14, s6, 1376')
        a.e(f's_add_u32 s14, s14, {ts}')
        a.e('s_lshl_b32 s14, s14, 8')
        for lam in range(8):
            acc = ACC + 32*t + 4*lam
            b = 8 + 8*(lam % 2)
            a.e(f'v_cvt_pk_bf16_f32 v{b}, v{acc}, v{acc+2}')
            a.e(f'v_cvt_pk_bf16_f32 v{b+1}, v{acc+1}, v{acc+3}')
            a.e(f'v_lshlrev_b32 v{b+2}, 16, v{b}')
            a.e(f'v_and_b32 v{b+3}, 0xffff0000, v{b}')
            a.e(f'v_lshlrev_b32 v{b+4}, 16, v{b+1}')
            a.e(f'v_and_b32 v{b+5}, 0xffff0000, v{b+1}')
            a.e(f'v_max_f32 v{b+2}, 0, v{b+2}')
            a.e(f'v_max_f32 v{b+3}, 0, v{b+3}')
            a.e(f'v_mul_f32 v{b+2}, v{b+2}, v{b+4}')
            a.e(f'v_mul_f32 v{b+3}, v{b+3}, v{b+5}')
            a.e(f'v_cvt_pk_bf16_f32 v{b+6}, v{b+2}, v{b+3}')
            a.e(f'buffer_store_dword v{b+6}, v30, s[56:59], s14 offen')
            if lam < 7: a.e(f's_add_u32 s14, s14, {172*256}')
    a.e('s_endpgm')
if __name__ == '__main__':
    print(gen_k3())
```

```python
from gen_common import *
K4_GRID = 256
K4_LDS = 65536
def gen_k4():
    a = Asm()
    a.raw(head('s4_gemm2_kernel'))
    load_kernargs(a)
    a.e(f's_cmp_ge_u32 s2, {K4_GRID}')
    a.e('s_cbranch_scc1 K4_END')
    a.e('v_and_b32 v1, 63, v0')
    a.e('v_lshrrev_b32 v2, 6, v0')
    a.e('s_nop 0')
    a.e('v_readfirstlane_b32 s3, v2')
    a.e('s_and_b32 s4, s2, 7')
    a.e('s_lshr_b32 s5, s2, 3')
    a.e('s_lshl_b32 s6, s4, 2')
    a.e('s_and_b32 s7, s5, 3')
    a.e('s_add_u32 s6, s6, s7')
    a.e('s_lshr_b32 s7, s5, 2')
    a.e('s_waitcnt lgkmcnt(0)')
    srd_ws(a, 44, WD, 32*43*1024)
    srd_ws(a, 48, HF, 128*172*256)
    srd_ws(a, 52, HR, 0x200000)
    srd(a, 56, 38, 39, 0x200000)
    a.e('v_lshlrev_b32 v3, 4, v1')
    a.e(f's_mul_i32 s8, s7, {4*43*1024}')
    a.e(f's_mul_i32 s9, s6, {4*44032}')
    a.e('s_lshl_b32 s10, s3, 10')
    a.e('s_add_u32 s8, s8, s10')
    a.e('s_add_u32 s9, s9, s10')
    for k in range(4):
        a.e(f's_add_u32 s{60+k}, s8, {k*43*1024}')
        a.e(f's_add_u32 s{64+k}, s9, {k*44032}')
    def freg(j, k):
        if j < 6: b = 64 + 32*j + 4*k; return f'v[{b}:{b+3}]'
        b = 32*(j-6) + 4*k; return f'a[{b}:{b+3}]'
    def loads(j):
        for k in range(4):
            a.e(f'buffer_load_dwordx4 {freg(j,k)}, v3, s[44:47], s{60+k} offen')
            a.e(f'buffer_load_dwordx4 {freg(j,4+k)}, v3, s[48:51], s{64+k} offen')
        for k in range(8): a.e(f's_add_u32 s{60+k}, s{60+k}, 4096')
    def mf(j):
        for aa in range(4):
            for b in range(4):
                acc = 160 + 4*(4*aa+b)
                src = '0' if j == 0 else f'a[{acc}:{acc+3}]'
                a.e(f'v_mfma_f32_16x16x32_bf16 a[{acc}:{acc+3}], {freg(j,aa)}, {freg(j,4+b)}, {src}')
    def body(n, tag):
        ahead = 7
        for j in range(min(ahead, n)): loads(j)
        issued = min(ahead, n)
        for j in range(n):
            a.e(f's_waitcnt vmcnt({8*(issued-j-1)})')
            mf(j)
            if issued < n:
                loads(issued); issued += 1
        a.e('s_branch K4_RED')
    a.e('s_cmp_eq_u32 s3, 3')
    a.e('s_cbranch_scc1 K4_TEN')
    body(11, 'a')
    a.label('K4_TEN')
    body(10, 'b')
    a.label('K4_RED')
    a.e('v_and_b32 v4, 15, v1')
    a.e('v_lshrrev_b32 v5, 4, v1')
    a.e('v_lshlrev_b32 v6, 10, v4')
    a.e('v_lshl_add_u32 v6, v5, 3, v6')
    a.e('s_lshl_b32 s8, s6, 16')
    a.e('s_lshl_b32 s9, s7, 7')
    a.e('s_add_u32 s8, s8, s9')
    a.e('s_lshl_b32 s9, s3, 5')
    a.e('s_add_u32 s8, s8, s9')
    for b in range(4):
        a.e(f's_add_u32 s{60+b}, s8, {b*16384}')
        a.e(f'buffer_load_dwordx2 v[{8+2*b}:{9+2*b}], v6, s[52:55], s{60+b} offen')
    a.e('v_lshl_add_u32 v7, v2, 14, v3')
    a.e('s_nop 7')
    for t in range(16):
        a.e(f'ds_write_b128 v7, a[{160+4*t}:{160+4*t+3}] offset:{1024*t}')
    a.e('v_lshl_add_u32 v7, v2, 12, v3')
    a.e('s_waitcnt lgkmcnt(0)')
    a.e('s_barrier')
    R = 64
    for b in range(4):
        for p in range(4):
            r = R + 16*b + 4*p
            a.e(f'ds_read_b128 v[{r}:{r+3}], v7 offset:{p*16384 + 1024*b}')
    a.e('s_waitcnt lgkmcnt(0) vmcnt(0)')
    for b in range(4):
        r = R + 16*b
        for j in range(4):
            a.e(f'v_add_f32 v{r+j}, v{r+j}, v{r+4+j}')
            a.e(f'v_add_f32 v{r+8+j}, v{r+8+j}, v{r+12+j}')
        for j in range(4): a.e(f'v_add_f32 v{r+j}, v{r+j}, v{r+8+j}')
        a.e(f'v_cvt_pk_bf16_f32 v{r+4}, v{r}, v{r+1}')
        a.e(f'v_cvt_pk_bf16_f32 v{r+5}, v{r+2}, v{r+3}')
        for k in range(2):
            a.e(f'v_lshlrev_b32 v{r+2*k}, 16, v{r+4+k}')
            a.e(f'v_and_b32 v{r+2*k+1}, 0xffff0000, v{r+4+k}')
            a.e(f'v_lshlrev_b32 v{r+8+2*k}, 16, v{8+2*b+k}')
            a.e(f'v_and_b32 v{r+8+2*k+1}, 0xffff0000, v{8+2*b+k}')
        for j in range(4): a.e(f'v_add_f32 v{r+j}, v{r+j}, v{r+8+j}')
        a.e(f'v_cvt_pk_bf16_f32 v{r+4}, v{r}, v{r+1}')
        a.e(f'v_cvt_pk_bf16_f32 v{r+5}, v{r+2}, v{r+3}')
        a.e(f'buffer_store_dwordx2 v[{r+4}:{r+5}], v6, s[56:59], s{60+b} offen')
    a.label('K4_END')
    a.e('s_endpgm')
    a.raw(kd('s4_gemm2_kernel', 480, accum=256))
    return a.text()
if __name__ == '__main__':
    print(gen_k4())
```

```python
import sys
from gen_k1 import *
from gen_k2 import *
from gen_k3 import *
from gen_k4 import *
def build(nk=4):
    hdr = open('sequential_preLN__ssm_conv_s4d__glu_gated_reglu__prompt.s.ref').read().split('\n')
    cm = [l for l in hdr if l.startswith(';') and '@launch' not in l]
    L = [f'; @launch kernel=s4_prep_kernel grid=({K1_GRID},1,1) block=(256,1,1) lds={K1_LDS}',
         f'; @launch kernel=s4_conv_kernel grid=({K2_GRID},1,1) block=(256,1,1) lds={K2_LDS}',
         f'; @launch kernel=s4_gemm1_kernel grid=({K3_GRID},1,1) block=(512,1,1) lds={K3_LDS}',
         f'; @launch kernel=s4_gemm2_kernel grid=({K4_GRID},1,1) block=(256,1,1) lds={K4_LDS}'][:nk]
    s = '\n'.join(cm + L) + '\n.amdgcn_target "amdgcn-amd-amdhsa--gfx950"\n.text\n'
    s += gen_k1() + gen_k2() + gen_k3() + gen_k4()
    return s
if __name__ == '__main__':
    out = sys.argv[1] if len(sys.argv) > 1 else 'sequential_preLN__ssm_conv_s4d__glu_gated_reglu__prompt.s'
    open(out, 'w').write(build())
```

```python
from asmlib import Asm
import struct, math
def f2u(x): return struct.unpack('<I', struct.pack('<f', x))[0]
def hx(x): return '0x%08x' % (x & 0xffffffff)
def fh(x): return hx(f2u(x))

X2  = 0x000000
H2  = 0x200000
HR  = 0x400000
KR  = 0x600000; KRS = 4224
ST  = 0x820000
KS  = 0x824000
WGU = 0x900000
WD  = 0xC00000
HF  = 0xE00000
WS_SIZE = 0x1400000

def srd(a, s, lo, hi, size):
    a.e(f's_mov_b32 s{s}, s{lo}')
    a.e(f's_and_b32 s{s+1}, s{hi}, 0xffff')
    a.e(f's_mov_b32 s{s+2}, {hx(size)}')
    a.e(f's_mov_b32 s{s+3}, 0x00020000')

def srd_ws(a, s, off, size, wslo=42, wshi=43):
    a.e(f's_add_u32 s{s}, s{wslo}, {hx(off)}')
    a.e(f's_addc_u32 s{s+1}, s{wshi}, 0')
    a.e(f's_and_b32 s{s+1}, s{s+1}, 0xffff')
    a.e(f's_mov_b32 s{s+2}, {hx(size)}')
    a.e(f's_mov_b32 s{s+3}, 0x00020000')

def load_kernargs(a):
    a.e('s_load_dwordx16 s[16:31], s[0:1], 0x0')
    a.e('s_load_dwordx8 s[32:39], s[0:1], 0x40')
    a.e('s_load_dwordx4 s[40:43], s[0:1], 0x60')

def allreduce64(a, regs, tmps, op='v_add_f32'):
    for mod in ('quad_perm:[1,0,3,2]', 'quad_perm:[2,3,0,1]', 'row_half_mirror', 'row_mirror'):
        for r in regs:
            a.e(f'{op}_dpp v{r}, v{r}, v{r} {mod} row_mask:0xf bank_mask:0xf')
    for sw in ('v_permlane16_swap_b32', 'v_permlane32_swap_b32'):
        for r, t in zip(regs, tmps): a.e(f'v_mov_b32 v{t}, v{r}')
        for r, t in zip(regs, tmps): a.e(f'{sw} v{r}, v{t}')
        for r, t in zip(regs, tmps): a.e(f'{op} v{r}, v{r}, v{t}')

def kd(name, vgpr, sgpr=100, accum=None):
    if accum is None: accum = (vgpr + 3)//4*4
    return f'''.section .rodata,"a"
.p2align 6
.amdhsa_kernel {name}
  .amdhsa_next_free_vgpr {vgpr}
  .amdhsa_next_free_sgpr {sgpr}
  .amdhsa_accum_offset {accum}
  .amdhsa_group_segment_fixed_size 0
  .amdhsa_kernarg_size 112
  .amdhsa_user_sgpr_count 2
  .amdhsa_user_sgpr_kernarg_segment_ptr 1
  .amdhsa_system_sgpr_workgroup_id_x 1
.end_amdhsa_kernel
.text
'''
def head(name):
    return f'''.globl {name}
.p2align 8
.type {name},@function
{name}:
'''

import os
STAMPS = os.environ.get('STAMPS', '') != ''
STB = 0x2000000
class Stamper:
    def __init__(self, a, kid, base=84): self.a = a; self.k = 0; self.kid = kid; self.base = base
    def stamp(self, force=False):
        if not STAMPS: return
        if getattr(self, 'off', False) and not force:
            self.k += 1; return
        a = self.a
        if self.k == 0:
            a.e('s_memrealtime s[96:97]')
        a.e('s_memtime s[98:99]')
        a.e('s_waitcnt lgkmcnt(0)')
        a.e(f's_mov_b32 s{self.base+self.k}, s98')
        self.k += 1
    def setk(self, k): self.k = k
    def dump(self, nw_log2, waveid_v):
        if not STAMPS: return
        a = self.a
        a.e('s_mov_b64 exec, -1')
        a.e('s_memrealtime s[98:99]')
        a.e('s_waitcnt lgkmcnt(0)')
        a.e('s_mov_b32 s97, s98')
        a.e(f's_add_u32 s76, s42, {hx(STB + self.kid*0x100000)}')
        a.e('s_addc_u32 s77, s43, 0')
        a.e('s_and_b32 s77, s77, 0xffff')
        a.e('s_mov_b32 s78, 0x100000')
        a.e('s_mov_b32 s79, 0x00020000')
        a.e(f'v_lshrrev_b32 v250, 6, v0') if False else None
        a.e(f's_lshl_b32 s75, s2, {nw_log2+6}')
        a.e(f'v_lshlrev_b32 v1, 6, v{waveid_v}')
        a.e('s_mov_b64 exec, 1')
        for k in range(98-self.base):
            a.e(f'v_mov_b32 v4, s{self.base+k}')
            a.e(f'buffer_store_dword v4, v1, s[76:79], s75 offen offset:{4*k}')
```

```python
import sys
from gen_common import *
LOG2E = 1.4426950408889634
def _split():
    m, e = math.frexp(LOG2E)
    hi = math.floor(m * 65536 + 0.5) / 65536 * 2**e
    return hi, (LOG2E - hi) * math.log(2.0)
C_HI, C_LO2 = _split()
FPL = int(os.environ.get('FPL', '1'))
MAPX = os.environ.get('MAPX', '1') == '1'
P2DBG = os.environ.get('P2DBG', '') != ''
TAILDBG = os.environ.get('TAILDBG', '') != ''
JOBDBG = os.environ.get('JOBDBG', '') != ''
SLEEP = int(os.environ.get('SLEEP', '4'))
POLLSC = os.environ.get('POLLSC', 'sc1')
EXACT = os.environ.get('EXACT', '') != ''

NAME = 'sequential_preLN__ssm_conv_s4d__glu_gated_reglu__prompt_kernel'
GRID = 256
KG = 96*544
TBL = 2*KG
RL = TBL + 4096
KSL = RL + 2*4224
STG = 117248
LNT = STG + 2*17408
CH = 40960; KCS = 4160; UB = 33280
XA = 1088; XB = 4384; XSZ = 32*XB
RED1 = XSZ; RED2 = XSZ + 4096; RSL = XSZ + 8192
STASH = XSZ + 8192 + 512
LDS = 161536
SC = 'sc1'
X2S = 8448; H2S = 8448; WGS = 16640; H2N = 0x280000
FL = 0x830000
NJ_GU = 172; NJ_WD = 192; NJ = NJ_GU + NJ_WD

def gen():
    a = Asm()
    a.raw(head(NAME))
    st = Stamper(a, 0, base=83); st.stamp()
    load_kernargs(a)
    a.e(f's_cmp_ge_u32 s2, {GRID}')
    a.e('s_cbranch_scc1 KEND')
    a.e('v_and_b32 v1, 63, v0')
    a.e('v_lshrrev_b32 v2, 6, v0')
    a.e('s_nop 0')
    a.e('v_readfirstlane_b32 s3, v2')
    a.e('s_waitcnt lgkmcnt(0)')
    srd(a, 72, 40, 41, 256)
    a.e('s_lshl_b32 s76, s2, 3')
    a.e('s_add_u32 s76, s76, s3')
    a.e('s_cmp_lg_u32 s76, 5')
    a.e('s_cbranch_scc1 NONONCE')
    a.e('s_memrealtime s[76:77]')
    a.e('s_waitcnt lgkmcnt(0)')
    a.e('s_lshl_b32 s76, s76, 3')
    a.e('s_or_b32 s76, s76, 0x40000000')
    a.e('v_mov_b32 v5, s76')
    a.e('v_mov_b32 v6, 0')
    a.e('s_mov_b64 exec, 1')
    a.e('buffer_store_dword v5, v6, s[72:75], 0 offen sc0 sc1')
    a.e('s_mov_b64 exec, -1')
    a.label('NONONCE')
    srd(a, 64, 16, 17, 0x200000)
    a.e('s_lshl_b32 s76, s2, 13')
    a.e('s_lshl_b32 s77, s3, 10')
    a.e('s_add_u32 s76, s76, s77')
    a.e('v_lshlrev_b32 v20, 4, v1')
    a.e('buffer_load_dwordx4 v[24:27], v20, s[64:67], s76 offen')
    a.e('v_lshrrev_b32 v21, 4, v0')
    a.e('v_lshlrev_b32 v21, 10, v21')
    a.e('v_and_b32 v22, 15, v0')
    a.e('v_lshl_add_u32 v21, v22, 4, v21')
    a.e('s_lshr_b32 s76, s2, 2')
    a.e('s_lshl_b32 s76, s76, 15')
    a.e('s_and_b32 s77, s2, 3')
    a.e('s_lshl_b32 s77, s77, 8')
    a.e('s_add_u32 s76, s76, s77')
    a.e('buffer_load_dwordx4 v[108:111], v21, s[64:67], s76 offen')
    srd(a, 44, 18, 19, 131072); srd(a, 48, 20, 21, 131072); srd(a, 52, 22, 23, 131072); srd(a, 56, 24, 25, 131072); srd(a, 60, 26, 27, 1024)
    a.e('s_lshr_b32 s4, s3, 2')
    a.e('s_lshl_b32 s5, s2, 1')
    a.e('s_add_u32 s5, s5, s4')
    a.e('s_lshl_b32 s76, s5, 8')
    a.e('s_lshl_b32 s77, s5, 1')
    a.e('v_and_b32 v3, 127, v0')
    a.e('v_lshlrev_b32 v5, 1, v3')
    a.e('v_lshlrev_b32 v6, 2, v1')
    a.e('v_mov_b32 v7, s77')
    a.e('buffer_load_ushort v10, v5, s[44:47], s76 offen')
    a.e('buffer_load_ushort v11, v5, s[48:51], s76 offen')
    a.e('buffer_load_ushort v12, v5, s[52:55], s76 offen')
    a.e('buffer_load_ushort v13, v5, s[56:59], s76 offen')
    a.e('buffer_load_dword v14, v6, s[52:55], s76 offen')
    a.e('buffer_load_dword v15, v6, s[56:59], s76 offen')
    a.e('buffer_load_ushort v16, v7, s[60:63], 0 offen')
    a.e('s_mov_b32 s80, 0x3f803f80')
    a.e('s_mov_b32 s81, 0x00003f80')
    a.e('s_mov_b32 s82, 0x3f800000')
    G = 32; O = 64
    STG2 = STG + 43*272
    a.e('s_cmp_ge_u32 s3, 6')
    a.e('s_cbranch_scc1 JL_WD')
    a.e('s_cmp_ge_u32 s3, 3')
    a.e('s_cselect_b32 s70, 1, 0')
    a.e('s_cselect_b32 s44, s34, s32')
    a.e('s_cselect_b32 s45, s35, s33')
    a.e('s_and_b32 s45, s45, 0xffff')
    a.e(f's_mov_b32 s46, {512*2752}')
    a.e('s_mov_b32 s47, 0x00020000')
    a.e('s_mul_i32 s71, s70, 3')
    a.e('s_sub_u32 s71, s3, s71')
    a.e('s_mul_i32 s76, s71, 14')
    a.e('s_min_u32 s77, s71, 1')
    a.e('s_add_u32 s76, s76, s77')
    a.e('s_add_u32 s77, s76, 13')
    a.e('s_cmp_eq_u32 s71, 0')
    a.e('s_cselect_b32 s77, 14, s77')
    a.e('v_add_u32 v17, s76, v1')
    a.e('v_min_u32 v17, s77, v17')
    a.e('s_and_b32 s76, s2, 3')
    a.e('s_mul_i32 s76, s76, 43')
    a.e('v_add_u32 v18, s76, v17')
    a.e('s_lshr_b32 s77, s2, 2')
    a.e('v_lshlrev_b32 v23, 4, v18')
    a.e(f's_mul_i32 s76, s77, {8*2752}')
    for j in range(8):
        a.e(f'buffer_load_dwordx4 v[{G+4*j}:{G+4*j+3}], v23, s[44:47], s76 offen')
        if j < 7: a.e('s_add_u32 s76, s76, 2752')
    a.e(f'v_mul_u32_u24 v19, {WGS}, v18')
    a.e('s_lshl_b32 s77, s77, 8')
    a.e('v_add_u32 v19, s77, v19')
    a.e('v_mul_u32_u24 v18, 272, v17')
    a.e('s_lshl_b32 s77, s70, 4')
    a.e(f's_add_u32 s77, s77, {STG}')
    a.e('v_add_u32 v18, s77, v18')
    a.e('s_mov_b32 s70, 32')
    a.e('s_branch JL_DONE')
    a.label('JL_WD')
    srd(a, 44, 36, 37, 1376*1024)
    a.e('s_sub_u32 s71, s3, 6')
    a.e('s_mul_i32 s76, s71, 22')
    a.e('s_add_u32 s77, s76, 20')
    a.e('s_cmp_eq_u32 s71, 0')
    a.e('s_cselect_b32 s77, 21, s77')
    a.e('v_add_u32 v17, s76, v1')
    a.e('v_min_u32 v17, s77, v17')
    a.e('s_mul_i32 s76, s2, 43')
    a.e('v_add_u32 v18, s76, v17')
    a.e('v_lshrrev_b32 v19, 6, v18')
    a.e('v_and_b32 v18, 63, v18')
    a.e('v_lshlrev_b32 v23, 13, v19')
    a.e('v_lshl_add_u32 v23, v18, 4, v23')
    a.e('s_movk_i32 s76, 0x1000')
    for j in range(8):
        so = 's76' if j >= 4 else '0'
        a.e(f'buffer_load_dwordx4 v[{G+4*j}:{G+4*j+3}], v23, s[44:47], {so} offen offset:{(j%4)*1024}')
    a.e('v_lshlrev_b32 v19, 8, v19')
    a.e('v_lshrrev_b32 v23, 1, v18')
    a.e('v_mul_u32_u24 v23, 44032, v23')
    a.e('v_add_u32 v19, v19, v23')
    a.e('v_and_b32 v18, 1, v18')
    a.e('v_lshl_add_u32 v19, v18, 7, v19')
    a.e('v_mul_u32_u24 v18, 144, v17')
    a.e(f'v_add_u32 v18, {STG2}, v18')
    a.e('s_mov_b32 s70, 16')
    a.label('JL_DONE')
    a.e('s_mov_b32 s78, 0x05040100')
    a.e('s_mov_b32 s79, 0x07060302')
    a.e('s_waitcnt vmcnt(15)')
    a.e('v_and_b32 v21, 15, v0')
    a.e(f'v_mul_u32_u24 v21, {4*144}, v21')
    a.e('v_lshrrev_b32 v22, 4, v0')
    a.e('v_lshl_add_u32 v21, v22, 2, v21')
    a.e(f'v_add_u32 v21, {LNT}, v21')
    for c in range(4): a.e(f'ds_write_b32 v21, v{108+c} offset:{144*c}')
    S = 28; TM = 29; Q = 30
    for c in range(4):
        src = '0' if c == 0 else f'v{S}'
        a.e(f'v_dot2_f32_bf16 v{S}, v{24+c}, s80, {src}', dotc=True)
    allreduce64(a, [S], [TM])
    a.e(f'v_mul_f32 v{S}, {fh(-1.0/512)}, v{S}')
    DD = 100
    for c in range(4):
        a.e(f'v_dot2_f32_bf16 v{DD+2*c}, v{24+c}, s81, v{S}')
        a.e(f'v_dot2_f32_bf16 v{DD+2*c+1}, v{24+c}, s82, v{S}')
    a.e(f'v_mul_f32 v{Q}, v{DD}, v{DD}')
    for k in range(1, 8): a.e(f'v_fmac_f32 v{Q}, v{DD+k}, v{DD+k}')
    allreduce64(a, [Q], [TM])
    a.e(f'v_mul_f32 v{Q}, {fh(1.0/512)}, v{Q}')
    a.e(f'v_cvt_pk_bf16_f32 v{S}, v{S}, v{Q}')
    a.e(f'v_and_b32 v{Q}, 0xffff0000, v{S}')
    a.e(f'v_add_f32 v{Q}, {fh(1e-5)}, v{Q}')
    a.e(f'v_cvt_pk_bf16_f32 v{Q}, v{Q}, v{Q}')
    a.e(f'v_and_b32 v{Q}, 0xffff0000, v{Q}')
    a.e(f'v_sqrt_f32 v{Q}, v{Q}')
    a.e(f'v_cvt_pk_bf16_f32 v{Q}, v{Q}, v{Q}')
    a.e(f'v_and_b32 v{Q}, 0xffff0000, v{Q}')
    a.e(f'v_and_b32 v{S}, 0xffff, v{S}')
    a.e(f'v_or_b32 v{S}, v{S}, v{Q}')
    a.e('v_lshlrev_b32 v22, 2, v2')
    a.e(f'v_add_u32 v22, {LNT+9216}, v22')
    a.e(f'ds_write_b32 v22, v{S}')
    a.e('v_lshrrev_b32 v22, 3, v0')
    a.e(f'v_mul_u32_u24 v21, 144, v22')
    a.e('v_and_b32 v31, 7, v0')
    a.e('v_lshl_add_u32 v21, v31, 4, v21')
    a.e(f'v_add_u32 v21, {LNT}, v21')
    a.e(f'v_mul_u32_u24 v22, {X2S}, v22')
    a.e('v_lshl_add_u32 v22, v31, 4, v22')
    a.e(f'v_mov_b32 v31, {LNT+9216}')
    srd_ws(a, 64, X2, 256*X2S); srd_ws(a, 60, ST, 8192)
    a.e('s_waitcnt vmcnt(0)')
    a.e('s_cmp_ge_u32 s3, 6')
    a.e('s_cbranch_scc1 JP_WD')
    for fi in range(8):
        o = O + 4*fi
        for kk in range(4):
            sel = 's79' if fi & 1 else 's78'
            a.e(f'v_perm_b32 v{o+kk}, v{G+4*(2*kk+1)+(fi>>1)}, v{G+4*(2*kk)+(fi>>1)}, {sel}')
        a.e(f'ds_write_b128 v18, v[{o}:{o+3}] offset:{32*fi}')
    a.e('v_and_b32 v18, 0xffffffe0, v18') if False else None
    a.e('s_cmp_ge_u32 s3, 3')
    a.e('s_cbranch_scc1 JP_DONE')
    a.e('ds_write_b32 v18, v19 offset:256')
    a.e('s_branch JP_DONE')
    a.label('JP_WD')
    for fi in range(8):
        o = O + 4*fi
        for kk in range(4):
            sel = 's79' if fi & 1 else 's78'
            a.e(f'v_perm_b32 v{o+kk}, v{G+4*(2*kk+1)+(fi>>1)}, v{G+4*(2*kk)+(fi>>1)}, {sel}')
        a.e(f'ds_write_b128 v18, v[{o}:{o+3}] offset:{16*fi}')
    a.e('ds_write_b32 v18, v19 offset:128')
    a.label('JP_DONE')
    a.e('v_lshrrev_b32 v17, 4, v0')
    a.e('v_mul_u32_u24 v17, 272, v17')
    a.e(f'v_add_u32 v17, {STG}, v17')
    a.e('v_and_b32 v18, 15, v0')
    a.e('v_lshlrev_b32 v18, 4, v18')
    a.e('v_add_u32 v19, v17, v18')
    a.e('v_lshrrev_b32 v23, 3, v0')
    a.e('v_min_u32 v23, 42, v23')
    a.e('v_mul_u32_u24 v23, 144, v23')
    a.e(f'v_add_u32 v23, {STG2}, v23')
    a.e('v_and_b32 v29, 7, v0')
    a.e('v_lshlrev_b32 v29, 4, v29')
    a.e('v_add_u32 v30, v23, v29')
    srd_ws(a, 52, WGU, 172*WGS); srd_ws(a, 56, WD, 32*43*1024)
    a.e('s_cmp_lg_u32 s3, 5')
    a.e('s_cbranch_scc1 NONL')
    a.e('v_mov_b32 v8, 0')
    a.e('buffer_load_dword v9, v8, s[72:75], 0 offen sc0 sc1')
    a.label('NONL')
    a.e('s_waitcnt lgkmcnt(0)')
    a.e('s_barrier')
    a.e('ds_read_b128 v[100:103], v19')
    a.e('ds_read_b32 v108, v17 offset:256')
    a.e(f'ds_read_b128 v[104:107], v19 offset:{32*272}')
    a.e(f'ds_read_b32 v109, v17 offset:{32*272+256}')
    a.e('ds_read_b128 v[24:27], v21')
    a.e('ds_read_b128 v[112:115], v31')
    a.e('ds_read_b128 v[116:119], v31 offset:16')
    a.e('s_and_b32 s76, s2, 3')
    a.e(f's_mul_i32 s76, s76, {64*X2S}')
    a.e('s_lshr_b32 s77, s2, 2')
    a.e('s_lshl_b32 s77, s77, 7')
    a.e('s_add_u32 s76, s76, s77')
    a.e('s_lshl_b32 s77, s2, 5')
    a.e('v_mov_b32 v31, 0')
    a.e('s_waitcnt lgkmcnt(2)')
    a.e(f'buffer_store_dwordx4 v[24:27], v22, s[64:67], s76 offen {SC}')
    a.e('s_cmp_lg_u32 s3, 0')
    a.e('s_cbranch_scc1 NOSTAT')
    a.e('s_waitcnt lgkmcnt(0)')
    a.e('s_mov_b64 exec, 1')
    a.e(f'buffer_store_dwordx4 v[112:115], v31, s[60:63], s77 offen {SC}')
    a.e(f'buffer_store_dwordx4 v[116:119], v31, s[60:63], s77 offen offset:16 {SC}')
    a.e('s_mov_b64 exec, -1')
    a.label('NOSTAT')
    if JOBDBG: st.setk(7); st.stamp(force=True)
    a.e('v_add_u32 v108, v108, v18')
    a.e('v_add_u32 v109, v109, v18')
    a.e('v_mov_b32 v47, 0x7f000000')
    a.e('v_cmp_gt_u32 vcc, 176, v0')
    a.e('v_cndmask_b32 v109, v47, v109, vcc')
    a.label('P2')
    st.setk(1); st.stamp()
    a.e('s_bfe_u32 s6, s3, 0x10001')
    a.e(f's_mov_b32 s64, {fh(512.0)}')
    a.e(f's_mov_b32 s65, {fh(128.0)}')
    a.e(f's_mov_b32 s66, {fh(4.0)}')
    a.e(f's_mov_b32 s67, {fh(64.0)}')
    a.e('s_cmp_eq_u32 s6, 0')
    a.e('s_cmov_b32 s64, 0')
    a.e(f's_cmov_b32 s65, {fh(32.0)}')
    a.e(f's_cmov_b32 s66, {fh(1.0)}')
    a.e(f's_cmov_b32 s67, {fh(16.0)}')
    a.e(f's_mov_b32 s8, {fh(C_HI)}')
    a.e(f's_mov_b32 s9, {fh(C_LO2)}')
    a.e(f's_mul_i32 s10, s4, {KG}')
    a.e(f's_mul_i32 s11, s6, {16*544}')
    a.e('s_add_u32 s11, s11, s10')
    a.e(f's_mul_i32 s12, s6, {32*544}')
    a.e('s_add_u32 s12, s12, s10')
    a.e('v_lshlrev_b32 v20, 2, v3')
    a.e('v_add_u32 v21, s11, v20')
    a.e('v_add_u32 v22, s12, v20')
    for r in (10, 11, 12, 13, 16): a.e(f'v_lshlrev_b32 v{r}, 16, v{r}')
    a.e('v_and_b32 v14, 0x7fff7fff, v14')
    a.e('v_and_b32 v15, 0x7fff7fff, v15')
    a.e('v_pk_max_u16 v14, v14, v15')
    a.e('v_lshrrev_b32 v15, 16, v14')
    a.e('v_and_b32 v14, 0xffff, v14')
    a.e('v_max_u32 v14, v14, v15')
    def expb(dst, x, t1, t2):
        a.e(f'v_mul_f32 v{t1}, s8, v{x}')
        a.e(f'v_mul_f32 v{t2}, s9, v{x}')
        a.e(f'v_exp_f32 v{t1}, v{t1}')
        a.e(f'v_fma_f32 v{t1}, v{t1}, v{t2}, v{t1}')
        a.e(f'v_cvt_pk_bf16_f32 v{t1}, v{t1}, v{t1}')
        a.e(f'v_and_b32 v{dst}, 0xffff0000, v{t1}')
    expb(16, 16, 24, 25); expb(10, 10, 26, 27)
    allreduce64(a, [14], [15], op='v_max_u32')
    for ins in ('v_lshrrev_b32 v14, 7, v14', 'v_max_u32 v14, 1, v14', 'v_min_u32 v14, 0xfd, v14', 'v_lshrrev_b32 v15, 23, v16',
                'v_max_u32 v15, 1, v15', 'v_min_u32 v15, 0xfd, v15', 'v_sub_u32 v24, 254, v14', 'v_lshlrev_b32 v24, 23, v24',
                'v_sub_u32 v25, 254, v15', 'v_lshlrev_b32 v25, 23, v25', 'v_lshlrev_b32 v14, 23, v14', 'v_lshlrev_b32 v15, 23, v15',
                'v_mul_f32 v14, v14, v15', 'v_add_f32 v14, v14, v14', 'v_mul_f32 v12, v12, v24', 'v_mul_f32 v13, v13, v24',
                'v_mul_f32 v25, v16, v25', 'v_mul_f32 v12, v12, v25', 'v_mul_f32 v13, v13, v25', 'v_mul_f32 v10, v10, v16',
                f'v_mul_f32 v10, {fh(-LOG2E)}, v10', 'v_mul_f32 v11, v11, v16', f'v_mul_f32 v11, {fh(1.0/(2*math.pi))}, v11'):
        a.e(ins)
    a.e('s_lshl_b32 s13, s4, 2')
    a.e(f's_add_u32 s13, s13, {KSL}')
    a.e('v_mov_b32 v7, s13')
    a.e('ds_write_b32 v7, v14')
    PW = 5
    def spin_head(tag):
        a.e('s_mov_b32 s15, 0x40000')
        a.label(f'WL_{tag}')
    def spin_tail(tag):
        a.e('s_sub_u32 s15, s15, 1')
        a.e('s_cmp_eq_u32 s15, 0')
        a.e(f's_cbranch_scc1 WD_{tag}')
        a.e('s_and_b64 vcc, vcc, exec')
        a.e(f's_cbranch_vccz WD_{tag}')
        if SLEEP: a.e(f's_sleep {SLEEP}')
        a.e(f's_branch WL_{tag}')
        a.label(f'WD_{tag}')
        a.e('s_mov_b64 exec, -1')
    def do_signal(val, tag):
        a.e(f's_cmp_lg_u32 s3, {PW}')
        a.e(f's_cbranch_scc1 SIG_{tag}')
        a.e('v_mov_b32 v6, 0')
        if val == 1:
            a.e('s_mov_b64 exec, 1')
            a.e('v_mov_b32 v5, v9')
            a.e('v_cmp_ne_u32 vcc, 0, v5')
            a.e('s_and_b64 vcc, vcc, exec')
            a.e('s_cbranch_vccnz WD_N')
            spin_head('N')
            a.e('buffer_load_dword v5, v6, s[72:75], 0 offen sc0 sc1')
            a.e('s_waitcnt vmcnt(0)')
            a.e('v_cmp_eq_u32 vcc, 0, v5')
            spin_tail('N')
            a.e('v_readfirstlane_b32 s25, v5')
            a.e('s_nop 3')
        a.e(f's_add_u32 s14, s25, {val}')
        a.e('v_mov_b32 v5, s14')
        a.e('s_mov_b64 exec, 1')
        a.e(f'buffer_store_dword v5, v6, s[76:79], s24 offen sc0 sc1')
        a.e('s_mov_b64 exec, -1')
        a.label(f'SIG_{tag}')
    def do_wait(val, nlanes, tag, off_sgpr=None):
        a.e(f's_cmp_lg_u32 s3, {PW}')
        a.e(f's_cbranch_scc1 WT_{tag}')
        a.e('v_lshlrev_b32 v5, 7, v1')
        a.e(f's_add_u32 s14, s25, {val}')
        grp = nlanes < 64
        if grp: a.e(f's_mov_b64 exec, {hx((1 << (4 if FPL == 4 else 16)) - 1)}')
        if FPL == 1 and not grp:
            a.e('v_add_u32 v20, 8192, v5'); a.e('v_add_u32 v21, 16384, v5'); a.e('v_add_u32 v22, 24576, v5')
        spin_head(tag)
        so = off_sgpr if off_sgpr else '0'
        if FPL == 4:
            a.e(f'buffer_load_dwordx4 v[16:19], v5, s[76:79], {so} offen {POLLSC}')
        elif grp:
            a.e(f'buffer_load_dword v16, v5, s[76:79], {so} offen {POLLSC}')
            a.e('s_waitcnt vmcnt(0)')
            for k in range(1, 4): a.e(f'v_mov_b32 v{16+k}, v16')
        else:
            for k, r in enumerate((5, 20, 21, 22)):
                a.e(f'buffer_load_dword v{16+k}, v{r}, s[76:79], 0 offen {POLLSC}')
        a.e('s_waitcnt vmcnt(0)')
        for k in range(4): a.e(f'v_subrev_u32 v{16+k}, s14, v{16+k}')
        a.e('v_max3_u32 v16, v16, v17, v18')
        a.e('v_max_u32 v16, v16, v19')
        a.e(f'v_cmp_lt_u32 vcc, {4-val}, v16')
        spin_tail(tag)
        a.label(f'WT_{tag}')
    a.e('s_and_b32 s16, s2, 7')
    a.e('s_lshr_b32 s17, s2, 3')
    if MAPX:
        a.e('s_lshl_b32 s18, s16, 1')
        a.e('s_lshr_b32 s19, s17, 4')
        a.e('s_add_u32 s18, s18, s19')
        a.e('s_and_b32 s19, s17, 15')
    else:
        a.e('s_and_b32 s18, s16, 1')
        a.e('s_lshl_b32 s18, s18, 3')
        a.e('s_and_b32 s19, s17, 7')
        a.e('s_add_u32 s18, s18, s19')
        a.e('s_lshr_b32 s19, s16, 1')
        a.e('s_lshl_b32 s19, s19, 2')
        a.e('s_lshr_b32 s20, s17, 3')
        a.e('s_add_u32 s19, s19, s20')
    a.e('s_lshl_b32 s24, s18, 4')
    a.e('s_add_u32 s24, s24, s19')
    if FPL == 4:
        a.e('s_lshr_b32 s26, s24, 2')
        a.e('s_lshl_b32 s26, s26, 7')
        a.e('s_and_b32 s24, s24, 3')
        a.e('s_lshl_b32 s24, s24, 2')
        a.e('s_add_u32 s24, s24, s26')
    else:
        a.e('s_lshl_b32 s24, s24, 7')
    FLS = 76
    srd_ws(a, FLS, FL, 32768)
    if P2DBG: st.setk(7); st.stamp(force=True)
    a.e('s_waitcnt vmcnt(0)')
    if P2DBG: st.setk(8); st.stamp(force=True)
    a.e('s_barrier')
    if P2DBG: st.setk(9); st.stamp(force=True)
    do_signal(1, 'A')
    if P2DBG: st.setk(10); st.stamp(force=True); st.setk(2)
    a.e(f'buffer_store_dwordx4 v[100:103], v108, s[52:55], 0 offen {SC}')
    a.e(f'buffer_store_dwordx4 v[104:107], v109, s[52:55], 0 offen {SC}')
    def cexp(dst, sp, conj, t):
        a.e(f'v_mul_f32 v{t}, s{sp}, v10')
        a.e(f'v_mul_f32 v{t+1}, s{sp}, v11')
        a.e(f'v_exp_f32 v{t}, v{t}')
        a.e(f'v_fract_f32 v{t+1}, v{t+1}')
        a.e(f'v_cos_f32 v{dst}, v{t+1}')
        a.e(f'v_sin_f32 v{dst+1}, v{t+1}')
        a.e(f'v_mul_f32 v{dst}, v{dst}, v{t}')
        if conj: a.e(f'v_mul_f32_e64 v{dst+1}, v{dst+1}, -v{t}')
        else: a.e(f'v_mul_f32 v{dst+1}, v{dst+1}, v{t}')
    def cmul(x, w, t):
        a.e(f'v_pk_mul_f32 v[{t}:{t+1}], v[{x}:{x+1}], v[{w}:{w+1}] op_sel:[0,0] op_sel_hi:[0,1]')
        a.e(f'v_pk_fma_f32 v[{x}:{x+1}], v[{x}:{x+1}], v[{w}:{w+1}], v[{t}:{t+1}] op_sel:[1,1,0] op_sel_hi:[1,0,1] neg_lo:[0,1,0]')
    X = 30; YA = 32; YB = 34; WX = 36; WY = 38; T0 = 40
    cexp(X, 64, False, T0); cexp(WX, 65, False, T0+2); cexp(WY, 66, True, T0+4); cexp(YB, 67, True, T0+6)
    cmul(X, 12, T0)
    a.e(f'v_mov_b32 v{YA}, 1.0')
    a.e(f'v_mov_b32 v{YA+1}, 0')
    P = 50
    for r in range(16):
        p = P + 3*(r % 2)
        a.e(f'v_cvt_pk_f16_f32 v{p}, v{X}, v{X+1}')
        a.e(f'v_cvt_pk_f16_f32 v{p+1}, v{YA}, v{YA+1}')
        a.e(f'v_cvt_pk_f16_f32 v{p+2}, v{YB}, v{YB+1}')
        a.e(f'ds_write_b32 v21, v{p} offset:{r*544}')
        a.e(f'ds_write_b32 v22, v{p+1} offset:{32*544 + r*544}')
        a.e(f'ds_write_b32 v22, v{p+2} offset:{32*544 + (16+r)*544}')
        if r < 15:
            cmul(X, WX, T0); cmul(YA, WY, T0+2); cmul(YB, WY, T0+4)
    a.e('s_and_b32 s7, s3, 1')
    a.e('v_and_b32 v3, 15, v1')
    a.e('v_lshrrev_b32 v4, 4, v1')
    a.e('v_mul_u32_u24 v7, 544, v3')
    a.e('v_lshl_add_u32 v7, v4, 4, v7')
    a.e(f's_mul_i32 s13, s7, {16*544}')
    a.e('s_add_u32 s13, s13, s12')
    a.e('v_add_u32 v8, s13, v7')
    a.e('v_add_u32 v9, s11, v7')
    a.e('s_lshl_b32 s13, s6, 10')
    a.e('s_lshl_b32 s14, s7, 5')
    a.e('s_add_u32 s13, s13, s14')
    a.e('s_lshl_b32 s14, s4, 11')
    a.e('s_add_u32 s13, s13, s14')
    a.e(f's_add_u32 s13, s13, {TBL}')
    a.e('v_lshlrev_b32 v20, 6, v3')
    a.e('v_lshl_add_u32 v20, v4, 3, v20')
    a.e('v_add_u32 v20, s13, v20')
    a.e('s_waitcnt lgkmcnt(0) vmcnt(0)')
    st.stamp()
    a.e('s_barrier')
    do_signal(2, 'W')
    a.e('s_and_b32 s13, s2, 15')
    a.e('s_lshl_b32 s13, s13, 2')
    FA = 64; FB = 96; AC = 60
    for ks in range(8):
        a.e(f'ds_read_b128 v[{FA+4*ks}:{FA+4*ks+3}], v8 offset:{32*544 + 64*ks}')
        a.e(f'ds_read_b128 v[{FB+4*ks}:{FB+4*ks+3}], v9 offset:{64*ks}')
    for ks in range(8):
        a.e(f's_waitcnt lgkmcnt({14-2*ks})')
        src = '0' if ks == 0 else f'v[{AC}:{AC+3}]'
        a.e(f'v_mfma_f32_16x16x32_f16 v[{AC}:{AC+3}], v[{FA+4*ks}:{FA+4*ks+3}], v[{FB+4*ks}:{FB+4*ks+3}], {src}')
    a.e('v_and_b32 v23, 255, v0')
    a.e('v_lshlrev_b32 v21, 3, v23')
    a.e('v_sub_u32 v21, 2047, v21')
    I = 30
    for i in range(8): a.e(f'v_subrev_u32 v{I+i}, {i}, v21')
    for i in range(8): a.e(f'v_cvt_f32_u32 v{I+i}, v{I+i}')
    for i in range(0, 8, 2): a.e(f'v_cvt_pk_bf16_f32 v{40+i//2}, v{I+i}, v{I+i+1}')
    for i in range(0, 8, 2):
        a.e(f'v_lshlrev_b32 v{I+i}, 16, v{40+i//2}')
        a.e(f'v_and_b32 v{I+i+1}, 0xffff0000, v{40+i//2}')
    for i in range(8): a.e(f'v_cvt_u32_f32 v{I+i}, v{I+i}')
    a.e('s_lshl_b32 s14, s4, 11')
    a.e(f's_add_u32 s14, s14, {TBL}')
    for i in range(8):
        a.e(f'v_lshrrev_b32 v{40+i}, 2, v{I+i}')
        a.e(f'v_add_u32 v{40+i}, 384, v{40+i}')
        a.e(f'v_min_u32 v{I+i}, v{I+i}, v{40+i}')
        a.e(f'v_lshl_add_u32 v{I+i}, v{I+i}, 1, s14')
    a.e(f'v_cvt_pk_f16_f32 v50, v{AC}, v{AC+1}')
    a.e(f'v_cvt_pk_f16_f32 v51, v{AC+2}, v{AC+3}')
    a.e('ds_write_b64 v20, v[50:51]')
    a.e('s_mul_i32 s20, s19, 11')
    a.e('s_mul_i32 s21, s19, 10')
    a.e('s_add_u32 s21, s21, 12')
    a.e('s_min_u32 s20, s20, s21')
    a.e('s_cmp_lt_u32 s19, 12')
    a.e('s_cselect_b32 s21, 3, 2')
    a.e('s_add_u32 s22, s20, s3')
    a.e('s_add_u32 s23, s22, 8')
    a.e('s_waitcnt lgkmcnt(0)')
    do_wait(1, 64, 'A')
    a.e('s_barrier')
    st.stamp()
    srd_ws(a, 44, X2, 256*X2S); srd_ws(a, 48, ST, 8192); srd(a, 60, 28, 29, 1024); srd_ws(a, 64, H2N, 256*H2S); srd_ws(a, 52, WGU, 172*WGS)
    a.e(f's_mul_i32 s68, s2, {H2S}')
    a.e('s_lshl_b32 s69, s2, 2')
    a.e(f's_mul_i32 s70, s2, {X2S}')
    XR = 8; UBF = 12; SR = 16
    a.e('v_lshlrev_b32 v28, 4, v0')
    a.e('v_mov_b32 v5, 0')
    a.e(f'buffer_load_dwordx4 v[{XR}:{XR+3}], v28, s[44:47], s70 offen {SC}')
    a.e(f'buffer_load_dwordx4 v[{SR}:{SR+3}], v28, s[48:51], 0 offen {SC}')
    a.e('buffer_load_dword v29, v5, s[60:63], s69 offen')
    a.e('v_lshlrev_b32 v7, 4, v1')
    def wloads(tile_s, abase):
        a.e(f's_mul_i32 s14, {tile_s}, {WGS}')
        for k4 in range(4):
            for k in range(4):
                r = abase + 4*(4*k4+k)
                a.e(f'buffer_load_dwordx4 a[{r}:{r+3}], v7, s[52:55], s14 offen offset:{k*1024} {SC}')
            if k4 < 3: a.e('s_add_u32 s14, s14, 4096')
    for i in range(8): a.e(f'ds_read_u16 v{40+i}, v{I+i}')
    a.e('s_mul_i32 s14, s4, 4224')
    a.e(f's_add_u32 s14, s14, {RL}')
    a.e('v_lshl_add_u32 v21, v23, 4, s14')
    for k in range(4): a.e(f'v_mov_b32 v{56+k}, 0')
    a.e('s_waitcnt lgkmcnt(0)')
    for k in range(4): a.e(f'v_lshl_or_b32 v{52+k}, v{41+2*k}, 16, v{40+2*k}')
    a.e('ds_write_b128 v21, v[52:55]')
    a.e('v_cmp_gt_u32 vcc, 8, v23')
    a.e('s_and_saveexec_b64 s[26:27], vcc')
    a.e('ds_write_b128 v21, v[56:59] offset:4096')
    a.e('s_mov_b64 exec, s[26:27]')
    a.e(f's_mul_i32 s14, s4, {CH}')
    a.e('v_lshl_add_u32 v22, v23, 4, s14')
    a.e('v_cmp_gt_u32 vcc, 160, v23')
    a.e('s_and_saveexec_b64 s[26:27], vcc')
    a.e(f'ds_write_b128 v22, v[56:59] offset:{UB}')
    a.e('s_mov_b64 exec, s[26:27]')
    a.e('s_waitcnt lgkmcnt(0)')
    a.e('s_barrier')
    def copies(vr, roff, vw, woff):
        A = 32; B = 40; TA = 48; TB2 = 56
        a.e(f'ds_read_b128 v[{A}:{A+3}], v{vr} offset:{roff}')
        a.e(f'ds_read_b128 v[{A+4}:{A+7}], v{vr} offset:{roff+16}')
        a.e('s_waitcnt lgkmcnt(0)')
        for k in range(6): a.e(f'v_mov_b32 v{B+k}, v{A+k+1}')
        for k in range(6):
            a.e(f'v_alignbit_b32 v{TA+k}, v{A+k+1}, v{A+k}, 16')
            a.e(f'v_alignbit_b32 v{TB2+k}, v{A+k+2}, v{A+k+1}, 16')
        src = {0: A, 4: A+2, 2: B, 6: B+2, 1: TA, 5: TA+2, 3: TB2, 7: TB2+2}
        for s in (0, 4, 2, 6, 1, 5, 3, 7):
            a.e(f'ds_write_b128 v{vw}, v[{src[s]}:{src[s]+3}] offset:{woff + s*KCS}')
    copies(21, 0, 22, 0)
    a.e('v_cmp_gt_u32 vcc, 4, v23')
    a.e('s_and_saveexec_b64 s[26:27], vcc')
    a.e('s_cbranch_execz NOX')
    a.e('s_waitcnt lgkmcnt(0)')
    copies(21, 4096, 22, 4096)
    a.label('NOX')
    a.e('s_mov_b64 exec, s[26:27]')
    a.e('s_waitcnt vmcnt(0)')
    T = 64
    for l in range(4):
        a.e(f'v_lshlrev_b32 v{T+l}, 16, v{SR+l}')
        a.e(f'v_and_b32 v{T+4+l}, 0xffff0000, v{SR+l}')
    for l in range(4): a.e(f'v_rcp_f32 v{T+4+l}, v{T+4+l}')
    for l in range(4):
        a.e(f'v_dot2_f32_bf16 v{T+8+2*l}, v{XR+l}, s81, v{T+l}')
        a.e(f'v_dot2_f32_bf16 v{T+9+2*l}, v{XR+l}, s82, v{T+l}')
    for l in range(4): a.e(f'v_cvt_pk_bf16_f32 v{T+l}, v{T+8+2*l}, v{T+9+2*l}')
    for l in range(4):
        a.e(f'v_lshlrev_b32 v{T+8+2*l}, 16, v{T+l}')
        a.e(f'v_and_b32 v{T+9+2*l}, 0xffff0000, v{T+l}')
    for l in range(4):
        a.e(f'v_mul_f32 v{T+8+2*l}, v{T+8+2*l}, v{T+4+l}')
        a.e(f'v_mul_f32 v{T+9+2*l}, v{T+9+2*l}, v{T+4+l}')
    for l in range(4): a.e(f'v_cvt_pk_bf16_f32 v{UBF+l}, v{T+8+2*l}, v{T+9+2*l}')
    for l in range(4):
        a.e(f'v_lshlrev_b32 v{T+8+2*l}, 16, v{UBF+l}')
        a.e(f'v_and_b32 v{T+9+2*l}, 0xffff0000, v{UBF+l}')
    for c in range(2):
        for k in range(2):
            a.e(f'v_cvt_pk_f16_f32 v{T+2*c+k}, v{T+8+4*k+c}, v{T+10+4*k+c}')
    a.e('v_lshrrev_b32 v24, 3, v0')
    a.e('v_mul_u32_u24 v24, 80, v24')
    a.e('v_and_b32 v25, 7, v0')
    a.e('v_lshl_add_u32 v24, v25, 3, v24')
    a.e(f'v_add_u32 v25, {CH}, v24')
    a.e(f'ds_write_b64 v24, v[{T}:{T+1}] offset:{UB+32*80}')
    a.e(f'ds_write_b64 v25, v[{T+2}:{T+3}] offset:{UB+32*80}')
    a.e('v_lshlrev_b32 v27, 4, v1')
    a.e(f's_mul_i32 s60, s22, {WGS}')
    a.e(f's_mul_i32 s61, s23, {WGS}')
    a.e('s_cmp_ge_u32 s3, s21')
    a.e(f's_cselect_b32 s61, {hx(0x7f000000)}, s61')
    a.e('s_and_b32 s6, s3, 3')
    a.e('v_and_b32 v6, 31, v1')
    a.e('v_lshrrev_b32 v7, 5, v1')
    a.e('v_and_b32 v26, 7, v6')
    a.e('v_sub_u32 v26, 7, v26')
    a.e(f'v_mul_u32_u24 v26, {KCS}, v26')
    a.e('v_lshrrev_b32 v25, 3, v6')
    a.e('v_sub_u32 v25, 3, v25')
    a.e('v_add_u32 v25, v25, v7')
    a.e('v_lshl_add_u32 v26, v25, 4, v26')
    a.e('s_sub_u32 s7, 3, s6')
    a.e('s_lshl_b32 s13, s7, 6')
    a.e('s_add_u32 s13, s13, s14')
    a.e('v_add_u32 v26, s13, v26')
    a.e('v_mul_u32_u24 v30, 80, v6')
    a.e('v_lshl_add_u32 v30, v7, 4, v30')
    a.e('s_mul_i32 s13, s7, 80')
    a.e('s_add_u32 s13, s13, s14')
    a.e('v_add_u32 v30, s13, v30')
    a.e('v_mul_u32_u24 v31, 144, v6')
    a.e('v_lshl_add_u32 v31, v7, 4, v31')
    a.e('s_mul_i32 s13, s6, 9216')
    a.e('s_add_u32 s13, s13, s14')
    a.e('v_add_u32 v31, s13, v31')
    a.e('v_lshrrev_b32 v20, 3, v0')
    a.e('v_min_u32 v20, 42, v20')
    a.e('v_mul_u32_u24 v20, 144, v20')
    a.e(f'v_add_u32 v20, {STG2}, v20')
    a.e('v_and_b32 v21, 7, v0')
    a.e('v_lshlrev_b32 v21, 4, v21')
    a.e('v_add_u32 v22, v20, v21')
    a.e('ds_read_b128 v[32:35], v22')
    a.e('ds_read_b32 v36, v20 offset:128')
    srd_ws(a, 56, WD, 32*43*1024)
    a.e('v_mov_b32 v37, 0x7f000000')
    a.e('v_cmp_gt_u32 vcc, 344, v0')
    a.e('s_waitcnt lgkmcnt(0)')
    a.e('v_add_u32 v36, v36, v21')
    a.e('v_cndmask_b32 v36, v37, v36, vcc')
    do_wait(2, 64, 'W')
    a.e(f'buffer_store_dwordx4 v[32:35], v36, s[56:59], 0 offen {SC}')
    st.stamp()
    a.e('s_barrier')
    ACC0 = 96; ACC1 = 112; F = [32, 64]
    NU = 8
    def rd(i, k):
        base = F[i % 2] + 4*k
        dst = f'v[{base}:{base+3}]'
        h = k // 4; kk = k % 4
        if kk == 0:   a.e(f'ds_read_b128 {dst}, v26 offset:{32*(126-8*i+h)-192}')
        elif kk == 1: a.e(f'ds_read_b128 {dst}, v30 offset:{UB + (29-4*i)*80 + 32*h}')
        elif kk == 2: a.e(f'ds_read_b128 {dst}, v30 offset:{UB + (61-4*i)*80 + 32*h}')
        else:         a.e(f'ds_read_b128 {dst}, v26 offset:{32*(62-8*i+h)-192}')
    def fr(i, k):
        base = F[i % 2] + 4*k
        return f'v[{base}:{base+3}]'
    for k in range(8): rd(0, k)
    for i in range(NU):
        last = (i == NU-1)
        waits = [6, 7, 8, 8, 9, 8] if not last else [6, 5, 4, 2, 1, 0]
        mf = [(ACC0, 0, 1), (ACC1, 0, 2), (ACC1, 3, 1), (ACC0, 4, 5), (ACC1, 4, 6), (ACC1, 7, 5)]
        for j, (acc, ka, kb) in enumerate(mf):
            a.e(f's_waitcnt lgkmcnt({waits[j]})')
            first = (i == 0 and j < 2)
            src = '0' if first else f'v[{acc}:{acc+15}]'
            a.e(f'v_mfma_f32_32x32x16_f16 v[{acc}:{acc+15}], {fr(i,ka)}, {fr(i,kb)}, {src}')
            if not last and j < 4:
                rd(i+1, 2*j); rd(i+1, 2*j+1)
            if j in (1, 4):
                ks = 2*i + (0 if j == 1 else 1)
                r = 4*ks
                a.e(f'buffer_load_dwordx4 a[{r}:{r+3}], v27, s[52:55], s60 offen offset:{(ks%4)*1024} {SC}')
            if j == 5 and i % 2 == 1 and not last:
                a.e('s_add_u32 s60, s60, 4096')
    st.stamp()
    a.e('s_barrier')
    for cg, acc in ((0, ACC0), (1, ACC1)):
        for i4 in range(4):
            a.e(f'ds_write_b128 v31, v[{acc+4*i4}:{acc+4*i4+3}] offset:{cg*4608 + 32*i4}')
    a.e('v_lshrrev_b32 v6, 3, v0')
    a.e('v_mul_u32_u24 v6, 144, v6')
    a.e('v_and_b32 v7, 7, v0')
    a.e('v_lshl_add_u32 v6, v7, 4, v6')
    a.e(f'v_add_u32 v7, {CH}, v6')
    a.e(f'v_mov_b32 v20, {KSL}')
    a.e('v_lshlrev_b32 v22, 16, v29')
    a.e('v_and_b32 v23, 0xffff0000, v29')
    a.e('s_waitcnt lgkmcnt(0)')
    a.e('s_barrier')
    PR = 32
    a.e('ds_read_b64 v[24:25], v20')
    for c in range(2):
        for p in range(4):
            r = PR + 16*c + 4*p
            a.e(f'ds_read_b128 v[{r}:{r+3}], v{6+c} offset:{p*9216}')
    W = 64
    for l in range(4):
        a.e(f'v_lshlrev_b32 v{W+2*l}, 16, v{UBF+l}')
        a.e(f'v_and_b32 v{W+2*l+1}, 0xffff0000, v{UBF+l}')
    for l in range(4):
        a.e(f'v_mul_f32 v{W+2*l}, v{W+2*l}, v22')
        a.e(f'v_mul_f32 v{W+2*l+1}, v{W+2*l+1}, v23')
    for l in range(4): a.e(f'v_cvt_pk_bf16_f32 v{W+8+l}, v{W+2*l}, v{W+2*l+1}')
    for l in range(4):
        a.e(f'v_lshlrev_b32 v{W+2*l}, 16, v{W+8+l}')
        a.e(f'v_and_b32 v{W+2*l+1}, 0xffff0000, v{W+8+l}')
    a.e('s_waitcnt lgkmcnt(0)')
    for c in range(2):
        r = PR + 16*c
        for l in range(4):
            a.e(f'v_add_f32 v{r+l}, v{r+l}, v{r+4+l}')
            a.e(f'v_add_f32 v{r+8+l}, v{r+8+l}, v{r+12+l}')
        for l in range(4): a.e(f'v_add_f32 v{r+l}, v{r+l}, v{r+8+l}')
        for l in range(4): a.e(f'v_mul_f32 v{r+l}, v{r+l}, v{24+c}')
    for l in range(4): a.e(f'v_cvt_pk_bf16_f32 v{W+8+l}, v{PR+l}, v{PR+16+l}')
    for l in range(4):
        a.e(f'v_lshlrev_b32 v{PR+2*l}, 16, v{W+8+l}')
        a.e(f'v_and_b32 v{PR+2*l+1}, 0xffff0000, v{W+8+l}')
    for l in range(8): a.e(f'v_add_f32 v{W+l}, v{W+l}, v{PR+l}')
    for l in range(4): a.e(f'v_cvt_pk_bf16_f32 v{W+8+l}, v{W+2*l}, v{W+2*l+1}')
    for l in range(4):
        a.e(f'v_lshlrev_b32 v{W+2*l}, 16, v{W+8+l}')
        a.e(f'v_and_b32 v{W+2*l+1}, 0xffff0000, v{W+8+l}')
        a.e(f'v_lshlrev_b32 v{PR+2*l}, 16, v{XR+l}')
        a.e(f'v_and_b32 v{PR+2*l+1}, 0xffff0000, v{XR+l}')
    for l in range(8): a.e(f'v_add_f32 v{W+l}, v{W+l}, v{PR+l}')
    for l in range(4): a.e(f'v_cvt_pk_bf16_f32 v{W+8+l}, v{W+2*l}, v{W+2*l+1}')
    a.e(f'buffer_store_dwordx4 v[{W+8}:{W+11}], v28, s[64:67], s68 offen {SC}')
    a.e('s_mov_b32 s6, s18'); a.e('s_mov_b32 s7, s19'); a.e('s_mov_b32 s9, s21'); a.e('s_mov_b32 s10, s22'); a.e('s_mov_b32 s11, s23')
    srd_ws(a, 44, H2N, 256*H2S); srd_ws(a, 56, HF, 128*172*256); srd_ws(a, 48, WD, 32*43*1024)
    a.e('v_and_b32 v3, 31, v1')
    a.e('v_lshrrev_b32 v4, 5, v1')
    a.e('v_lshl_add_u32 v5, v2, 1, v4')
    a.e(f'v_mul_u32_u24 v8, {4*H2S}, v5')
    a.e('v_lshl_add_u32 v8, v3, 4, v8')
    a.e('s_lshl_b32 s12, s6, 9')
    a.e('v_add_u32 v8, s12, v8')
    a.e('v_mov_b32 v62, v5')
    a.e('s_and_b32 s13, s2, 15')
    a.e('s_lshl_b32 s13, s13, 2')
    a.e('s_waitcnt vmcnt(0)')
    st.stamp()
    if JOBDBG or P2DBG: st.off = True
    a.e('s_barrier')
    do_signal(3, 'B')
    a.e('s_cmp_ge_u32 s3, s21')
    a.e('s_cbranch_scc1 NOWB')
    a.e('v_lshlrev_b32 v7, 4, v1')
    wloads('s23', 64)
    a.label('NOWB')
    do_wait(3, 64, 'B')
    a.e('s_barrier')
    st.stamp()
    HV = 64
    for i in range(4):
        for c in range(4):
            a.e(f's_mov_b32 s13, {(64*i + c)*H2S}')
            r = HV + 16*i + 4*c
            a.e(f'buffer_load_dwordx4 v[{r}:{r+3}], v8, s[44:47], s13 offen {SC}')
    a.e('v_mov_b32 v5, v62')
    a.e('s_and_b32 s4, s7, 1')
    a.e('s_lshl_b32 s5, s6, 1')
    a.e('s_add_u32 s5, s5, s4')
    a.e('s_lshr_b32 s4, s7, 1')
    a.e(f's_mul_i32 s8, s4, {4*43*1024}')
    a.e('s_lshl_b32 s12, s3, 10')
    a.e('s_add_u32 s8, s8, s12')
    for k in range(4): a.e(f's_add_u32 s{60+k}, s8, {k*43*1024}')
    a.e(f's_mul_i32 s8, s5, {4*44032}')
    a.e('s_add_u32 s8, s8, s12')
    for k in range(4): a.e(f's_add_u32 s{64+k}, s8, {k*44032}')
    ln2(a, st)
    a.e('s_cmp_lt_u32 s3, s9')
    a.e('s_cbranch_scc1 G1_TWO')
    a.e('s_cmp_lt_u32 s3, 3')
    a.e('s_cbranch_scc1 G1_16')
    gemm1(a, 1, 5); a.e('s_branch G1_DONE')
    a.label('G1_16')
    gemm1(a, 1, 6); a.e('s_branch G1_DONE')
    a.label('G1_TWO')
    gemm1(a, 2, 6)
    a.label('G1_DONE')
    a.e(f's_lshl_b32 s12, s6, {9 if FPL == 4 else 11}')
    a.e('s_waitcnt vmcnt(0)')
    st.stamp()
    a.e('s_barrier')
    do_signal(4, 'C')
    srd_ws(a, 48, HF, 128*172*256); srd(a, 56, 38, 39, 0x200000)
    do_wait(4, 4, 'C', off_sgpr='s12')
    a.e('v_lshlrev_b32 v3, 4, v1')
    a.e('s_barrier')
    st.stamp()
    def bfr(j, k):
        jj = j % 5
        return f'v[{48+16*jj+4*k}:{48+16*jj+4*k+3}]'
    def accr(t):
        return f'a[{96+4*t}:{96+4*t+3}]' if t < 8 else f'v[{16+4*(t-8)}:{16+4*(t-8)+3}]'
    def g2body(n):
        def bl(j):
            for k in range(4):
                a.e(f'buffer_load_dwordx4 {bfr(j,k)}, v3, s[48:51], s{64+k} offen {SC}')
            for k in range(4): a.e(f's_add_u32 s{64+k}, s{64+k}, 8192')
        for j in range(5): bl(j)
        issued = 5
        for j in range(n):
            a.e(f's_waitcnt vmcnt({4*(issued-j-1)})')
            if TAILDBG and j == 0: st.setk(1); st.stamp(force=True)
            if TAILDBG and j == n-1: st.setk(2); st.stamp(force=True)
            for aa in range(4):
                for b in range(4):
                    t = 4*aa+b
                    src = '0' if j == 0 else accr(t)
                    a.e(f'v_mfma_f32_16x16x32_bf16 {accr(t)}, {AF(j,aa)}, {bfr(j,b)}, {src}')
            if issued < n:
                bl(issued); issued += 1
        a.e('s_branch G2_RED')
    a.e('s_cmp_ge_u32 s3, 3')
    a.e('s_cbranch_scc1 G2_FIVE')
    g2body(6)
    a.label('G2_FIVE')
    g2body(5)
    a.label('G2_RED')
    if TAILDBG: st.setk(3); st.stamp(force=True)
    a.e('v_and_b32 v4, 15, v1')
    a.e('v_lshrrev_b32 v5, 4, v1')
    a.e('v_lshlrev_b32 v6, 10, v4')
    a.e('v_lshl_add_u32 v6, v5, 3, v6')
    a.e('s_lshl_b32 s8, s5, 16')
    a.e('s_lshl_b32 s9, s4, 7')
    a.e('s_add_u32 s8, s8, s9')
    a.e('s_lshr_b32 s9, s3, 1')
    a.e('s_lshl_b32 s9, s9, 5')
    a.e('s_add_u32 s8, s8, s9')
    a.e('s_and_b32 s13, s3, 1')
    a.e('s_lshl_b32 s14, s13, 15')
    a.e('s_add_u32 s60, s8, s14')
    a.e('s_add_u32 s61, s60, 16384')
    a.e('v_mul_u32_u24 v8, 144, v4')
    a.e('v_lshl_add_u32 v8, v5, 3, v8')
    a.e(f's_mul_i32 s14, s13, {32*144}')
    a.e('s_add_u32 s14, s14, s9')
    a.e(f's_add_u32 s14, s14, {STASH}')
    a.e('v_add_u32 v8, s14, v8')
    a.e('ds_read_b64 v[10:11], v8')
    a.e(f'ds_read_b64 v[12:13], v8 offset:{16*144}')
    a.e('v_lshl_add_u32 v7, v2, 14, v3')
    a.e('s_nop 7')
    for t in range(16):
        a.e(f'ds_write_b128 v7, {accr(t)} offset:{1024*t}')
    a.e('v_lshl_add_u32 v7, v2, 11, v3')
    a.e('v_add_u32 v9, 65536, v7')
    a.e('s_waitcnt lgkmcnt(0)')
    if TAILDBG: st.setk(4); st.stamp(force=True)
    a.e('s_barrier')
    if TAILDBG: st.setk(5); st.stamp(force=True)
    R = 64
    for b in range(2):
        for p in range(8):
            r = R + 32*b + 4*p
            a.e(f'ds_read_b128 v[{r}:{r+3}], v{7 if p < 4 else 9} offset:{(p%4)*16384 + 1024*b}')
    a.e('s_waitcnt lgkmcnt(0)')
    for b in range(2):
        r = R + 32*b
        for stp in (16, 8, 4):
            for k in range(stp): a.e(f'v_add_f32 v{r+k}, v{r+k}, v{r+k+stp}')
        a.e(f'v_cvt_pk_bf16_f32 v{r+4}, v{r}, v{r+1}')
        a.e(f'v_cvt_pk_bf16_f32 v{r+5}, v{r+2}, v{r+3}')
        for k in range(2):
            a.e(f'v_lshlrev_b32 v{r+2*k}, 16, v{r+4+k}')
            a.e(f'v_and_b32 v{r+2*k+1}, 0xffff0000, v{r+4+k}')
            a.e(f'v_lshlrev_b32 v{r+8+2*k}, 16, v{10+2*b+k}')
            a.e(f'v_and_b32 v{r+8+2*k+1}, 0xffff0000, v{10+2*b+k}')
        for j in range(4): a.e(f'v_add_f32 v{r+j}, v{r+j}, v{r+8+j}')
        a.e(f'v_cvt_pk_bf16_f32 v{r+4}, v{r}, v{r+1}')
        a.e(f'v_cvt_pk_bf16_f32 v{r+5}, v{r+2}, v{r+3}')
        a.e(f'buffer_store_dwordx2 v[{r+4}:{r+5}], v6, s[56:59], s{60+b} offen')
    if STAMPS:
        a.e('s_waitcnt vmcnt(0)'); st.setk(12); st.stamp(force=True); st.dump(3, 2)
    a.label('KEND')
    a.e('s_endpgm')
    a.raw(kd(NAME, 256, accum=128))
    return a.text()

def AF(j, k):
    b = AFMAP[j] + 4*k
    return f'a[{b}:{b+3}]'
AFMAP = [0, 64, 16, 80, 32, 48]

def ln2(a, st):
    HV = 64
    S = 8; TM = 12; RB = 16
    a.e('v_lshlrev_b32 v48, 4, v3')
    a.e('v_lshl_add_u32 v49, v2, 9, v48')
    for i in range(4):
        a.e(f's_waitcnt vmcnt({12-4*i})')
        for c in range(4):
            for e in range(4):
                src = '0' if (i == 0 and c == 0) else f'v{S+e}'
                a.e(f'v_dot2_f32_bf16 v{S+e}, v{HV+16*i+4*c+e}, s80, {src}', dotc=True)
    st.stamp()
    def xpart(R, red):
        for e in range(4): a.e(f'v_mov_b32 v{TM+e}, v{R+e}')
        for e in range(4): a.e(f'v_permlane32_swap_b32 v{R+e}, v{TM+e}')
        for e in range(4): a.e(f'v_add_f32 v{R+e}, v{R+e}, v{TM+e}')
        a.e(f'v_add_u32 v50, {red}, v49')
        a.e(f'ds_write_b128 v50, v[{R}:{R+3}]')
    def xsum(R, red):
        a.e(f'v_add_u32 v51, {red}, v48')
        for w in range(8):
            a.e(f'ds_read_b128 v[{RB+4*w}:{RB+4*w+3}], v51 offset:{512*w}')
        a.e('s_waitcnt lgkmcnt(0)')
        for stp in (16, 8, 4):
            for k in range(stp): a.e(f'v_add_f32 v{RB+k}, v{RB+k}, v{RB+k+stp}')
        for e in range(4): a.e(f'v_mov_b32 v{R+e}, v{RB+e}')
    xpart(S, RED1)
    a.e('s_lshr_b32 s14, s3, 2')
    a.e('s_and_b32 s15, s4, 1')
    a.e('s_cmp_lg_u32 s14, s15')
    a.e('s_cbranch_scc1 NOHR')
    a.e('s_lshr_b32 s14, s4, 1')
    for i in range(4):
        if i < 3:
            a.e(f's_cmp_lg_u32 s14, {i}')
            a.e(f's_cbranch_scc1 HR{i+1}')
        for e in range(4):
            for c in range(4): a.e(f'v_mov_b32 v{RB+4*e+c}, v{HV+16*i+4*c+e}')
        if i < 3:
            a.e('s_branch HRS')
            a.label(f'HR{i+1}')
    a.label('HRS')
    a.e('v_and_b32 v50, 15, v3')
    a.e(f'v_mul_u32_u24 v50, {4*144}, v50')
    a.e('v_and_b32 v51, 7, v5')
    a.e('v_lshl_add_u32 v50, v51, 4, v50')
    a.e(f'v_add_u32 v50, {STASH}, v50')
    a.e('v_lshrrev_b32 v51, 4, v3')
    a.e('s_and_b32 s15, s7, 1')
    a.e('v_cmp_eq_u32 vcc, s15, v51')
    a.e('s_and_saveexec_b64 s[26:27], vcc')
    for e in range(4):
        a.e(f'ds_write_b128 v50, v[{RB+4*e}:{RB+4*e+3}] offset:{144*e}')
    a.e('s_mov_b64 exec, s[26:27]')
    a.label('NOHR')
    a.e('s_waitcnt lgkmcnt(0)')
    a.e('s_barrier')
    xsum(S, RED1)
    NM = 52; DL = 56
    for e in range(4): a.e(f'v_mul_f32 v{S+e}, {fh(-1.0/512)}, v{S+e}')
    for e in range(0, 4, 2): a.e(f'v_cvt_pk_bf16_f32 v{TM+e}, v{S+e}, v{S+e+1}')
    for e in range(0, 4, 2):
        a.e(f'v_lshlrev_b32 v{NM+e}, 16, v{TM+e}')
        a.e(f'v_and_b32 v{NM+e+1}, 0xffff0000, v{TM+e}')
    for e in range(4): a.e(f'v_sub_f32 v{DL+e}, v{NM+e}, v{S+e}')
    Q2 = 8; DT = 16; OUT = 32
    a.e(f'v_mul_u32_u24 v50, {XB}, v3')
    a.e('v_lshl_add_u32 v50, v5, 4, v50')
    for k in range(8): a.e(f'v_mov_b32 v{Q2+k}, 0')
    for i in range(4):
        for e2 in range(2):
            idx = [(c, e) for e in (2*e2, 2*e2+1) for c in range(4)]
            for k, (c, e) in enumerate(idx):
                r = HV+16*i+4*c+e
                a.e(f'v_dot2_f32_bf16 v{DT+2*k}, v{r}, s81, v{NM+e}')
                a.e(f'v_dot2_f32_bf16 v{DT+2*k+1}, v{r}, s82, v{NM+e}')
            for k, (c, e) in enumerate(idx):
                r = HV+16*i+4*c+e
                a.e(f'v_pk_fma_f32 v[{Q2+2*e}:{Q2+2*e+1}], v[{DT+2*k}:{DT+2*k+1}], v[{DT+2*k}:{DT+2*k+1}], v[{Q2+2*e}:{Q2+2*e+1}]')
                if EXACT: a.e(f'v_cvt_pk_bf16_f32 v{r}, v{DT+2*k}, v{DT+2*k+1}')
                else: a.e(f'v_cvt_pk_bf16_f32 v{OUT+8*(e2^(i&1)^(i&1))+4*(e&1)+c + (16 if False else 0)}, v{DT+2*k}, v{DT+2*k+1}')
            if not EXACT:
                for e in (2*e2, 2*e2+1):
                    o = OUT + 8*e2 + 4*(e&1)
                    a.e(f'ds_write_b128 v50, v[{o}:{o+3}] offset:{e*XA + 256*i}')
    Q = 60
    for e in range(4): a.e(f'v_add_f32 v{Q+e}, v{Q2+2*e}, v{Q2+2*e+1}')
    xpart(Q, RED2)
    a.e('s_waitcnt lgkmcnt(0)')
    a.e('s_barrier')
    global qfin
    def qfin(QQ, DLL, RBB):
        for w in range(8):
            a.e(f'ds_read_b128 v[{RBB+4*w}:{RBB+4*w+3}], v23 offset:{512*w}')
        a.e('s_waitcnt lgkmcnt(0)')
        for stp in (16, 8, 4):
            for k in range(stp): a.e(f'v_add_f32 v{RBB+k}, v{RBB+k}, v{RBB+k+stp}')
        Q = RBB; DL = DLL
        for e in range(4): a.e(f'v_mul_f32 v{DL+e}, v{DL+e}, v{DL+e}')
        a.e(f's_mov_b32 s15, {fh(1.0/512)}')
        for e in range(4): a.e(f'v_fma_f32 v{Q+e}, v{Q+e}, s15, -v{DL+e}')
        for e in range(4): a.e(f'v_max_f32 v{Q+e}, 0, v{Q+e}')
        for e in range(4): a.e(f'v_cvt_pk_bf16_f32 v{Q+e}, v{Q+e}, v{Q+e}')
        for e in range(4): a.e(f'v_and_b32 v{Q+e}, 0xffff0000, v{Q+e}')
        for e in range(4): a.e(f'v_add_f32 v{Q+e}, {fh(1e-5)}, v{Q+e}')
        for e in range(4): a.e(f'v_cvt_pk_bf16_f32 v{Q+e}, v{Q+e}, v{Q+e}')
        for e in range(4): a.e(f'v_and_b32 v{Q+e}, 0xffff0000, v{Q+e}')
        for e in range(4): a.e(f'v_sqrt_f32 v{Q+e}, v{Q+e}')
        for e in range(4): a.e(f'v_cvt_pk_bf16_f32 v{Q+e}, v{Q+e}, v{Q+e}')
        for e in range(4): a.e(f'v_and_b32 v{Q+e}, 0xffff0000, v{Q+e}')
        for e in range(4): a.e(f'v_rcp_f32 v{Q+e}, v{Q+e}')
        a.e(f'v_add_u32 v22, {RSL-RED2}, v23')
        a.e(f'ds_write_b128 v22, v[{Q}:{Q+3}]')
    assert not EXACT
    a.e(f'v_add_u32 v23, {RED2}, v48')
    for e in range(4): a.e(f'v_mov_b32 v{24+e}, v{DL+e}')
    a.e('v_and_b32 v3, 15, v1')
    a.e('v_lshrrev_b32 v4, 4, v1')
    a.e('v_and_b32 v5, 3, v3')
    a.e(f'v_mul_u32_u24 v5, {XA}, v5')
    a.e('v_lshrrev_b32 v6, 2, v3')
    a.e(f'v_mul_u32_u24 v6, {XB}, v6')
    a.e('v_add_u32 v5, v5, v6')
    a.e('v_lshl_add_u32 v28, v4, 4, v5')
    a.e(f'v_add_u32 v29, {4*4*XB}, v28')
    a.e(f'v_mul_u32_u24 v30, {172*256}, v4')
    a.e('v_lshl_add_u32 v30, v3, 4, v30')
    a.e('v_lshlrev_b32 v31, 2, v3')
    a.e(f'v_add_u32 v31, {RSL}, v31')
    a.e('v_lshlrev_b32 v7, 4, v1')
    a.e('s_waitcnt lgkmcnt(0)')
    st.stamp()
    if EXACT: a.e('s_barrier')

def gemm1(a, nt, nk):
    XF = 32; ACC = 64
    def rdgrp(ks, g):
        for k in range(4):
            r = XF + 16*g + 4*k
            a.e(f'ds_read_b128 v[{r}:{r+3}], v{28+g} offset:{k*4*XB + 64*ks}')
    def mfgrp(ks, g):
        for k in range(4):
            lam = 4*g + k
            for t in range(nt):
                acc = ACC + 32*t + 4*lam
                src = '0' if ks == 0 else f'v[{acc}:{acc+3}]'
                a.e(f'v_mfma_f32_16x16x32_bf16 v[{acc}:{acc+3}], a[{64*t+4*ks}:{64*t+4*ks+3}], v[{XF+16*g+4*k}:{XF+16*g+4*k+3}], {src}')
    def wd(j):
        for k in range(4):
            a.e(f'buffer_load_dwordx4 {AF(j,k)}, v7, s[48:51], s{60+k} offen offset:0 {SC}')
        for k in range(4): a.e(f's_add_u32 s{60+k}, s{60+k}, 8192')
    free_after = [(AFMAP[j]//4 + 3) if AFMAP[j] < 64 else ((AFMAP[j]-64)//4 + 3 if nt == 2 else -1) for j in range(nk)]
    sched = []; cur = -1
    for j in range(nk):
        cur = max(cur, free_after[j]); sched.append(cur)
    rdgrp(0, 0)
    for ks in range(16):
        rdgrp(ks, 1)
        a.e('s_waitcnt lgkmcnt(4)')
        mfgrp(ks, 0)
        if ks < 15:
            rdgrp(ks+1, 0)
            a.e('s_waitcnt lgkmcnt(4)')
        else:
            a.e('s_waitcnt lgkmcnt(0)')
        mfgrp(ks, 1)
        for j in range(nk):
            if sched[j] == ks and ks < 15: wd(j)
    for j in range(nk):
        if sched[j] >= 15: wd(j)
    qfin(0, 24, 32)
    a.e('s_waitcnt lgkmcnt(0)')
    for lam in range(8): a.e(f'ds_read_b32 v{48+lam}, v31 offset:{64*lam}')
    a.e('s_waitcnt lgkmcnt(0)')
    for t in range(nt):
        ts = 's10' if t == 0 else 's11'
        a.e('s_mul_i32 s14, s6, 1376')
        a.e(f's_add_u32 s14, s14, {ts}')
        a.e('s_lshl_b32 s14, s14, 8')
        for half in range(2):
            ob = 24 + 0
            OUTR = 32 + 4*((2*t+half) % 4)
            for l4 in range(4):
                lam = 4*half + l4
                acc = ACC + 32*t + 4*lam
                b = 8 + 8*(lam % 2)
                if not EXACT:
                    for k in range(4): a.e(f'v_mul_f32 v{acc+k}, v{acc+k}, v{48+lam}')
                a.e(f'v_cvt_pk_bf16_f32 v{b}, v{acc}, v{acc+2}')
                a.e(f'v_cvt_pk_bf16_f32 v{b+1}, v{acc+1}, v{acc+3}')
                a.e(f'v_lshlrev_b32 v{b+2}, 16, v{b}')
                a.e(f'v_and_b32 v{b+3}, 0xffff0000, v{b}')
                a.e(f'v_lshlrev_b32 v{b+4}, 16, v{b+1}')
                a.e(f'v_and_b32 v{b+5}, 0xffff0000, v{b+1}')
                a.e(f'v_max_f32 v{b+2}, 0, v{b+2}')
                a.e(f'v_max_f32 v{b+3}, 0, v{b+3}')
                a.e(f'v_mul_f32 v{b+2}, v{b+2}, v{b+4}')
                a.e(f'v_mul_f32 v{b+3}, v{b+3}, v{b+5}')
                a.e(f'v_cvt_pk_bf16_f32 v{OUTR+l4}, v{b+2}, v{b+3}')
            a.e(f'v_permlane16_swap_b32 v{OUTR}, v{OUTR+1}')
            a.e(f'v_permlane16_swap_b32 v{OUTR+2}, v{OUTR+3}')
            a.e(f'v_permlane32_swap_b32 v{OUTR}, v{OUTR+2}')
            a.e(f'v_permlane32_swap_b32 v{OUTR+1}, v{OUTR+3}')
            a.e(f'buffer_store_dwordx4 v[{OUTR}:{OUTR+3}], v30, s[56:59], s14 offen {SC}')
            if half == 0: a.e(f's_add_u32 s14, s14, {4*172*256}')

def build():
    hdr = open('sequential_preLN__ssm_conv_s4d__glu_gated_reglu__prompt.s.ref').read().split('\n')
    cm = [l for l in hdr if l.startswith(';') and '@launch' not in l]
    L = [f'; @launch grid=({GRID},1,1) block=(512,1,1) lds={LDS}']
    return '\n'.join(cm + L) + '\n.amdgcn_target "amdgcn-amd-amdhsa--gfx950"\n.text\n' + gen()
if __name__ == '__main__':
    out = sys.argv[1] if len(sys.argv) > 1 else 'fused10.s'
    open(out, 'w').write(build())
```

```python
import sys
from gen_common import *
LOG2E = 1.4426950408889634
def _split():
    m, e = math.frexp(LOG2E)
    hi = math.floor(m * 65536 + 0.5) / 65536 * 2**e
    return hi, (LOG2E - hi) * math.log(2.0)
C_HI, C_LO2 = _split()
FPL = int(os.environ.get('FPL', '1'))
MAPX = os.environ.get('MAPX', '1') == '1'
P2DBG = os.environ.get('P2DBG', '') != ''
LOCAL = os.environ.get('LOCAL', '') != ''
OUTSC = os.environ.get('OUTSC', '')
G1DBG = os.environ.get('G1DBG', '') != ''
TAILDBG = os.environ.get('TAILDBG', '') != ''
JOBDBG = os.environ.get('JOBDBG', '') != ''
SLEEP = int(os.environ.get('SLEEP', '4'))
POLLSC = os.environ.get('POLLSC', 'sc1')
EXACT = os.environ.get('EXACT', '') != ''

NAME = 'sequential_preLN__ssm_conv_s4d__glu_gated_reglu__prompt_kernel'
GRID = 256
KG = 96*544
TBL = 2*KG
RL = TBL + 4096
KSL = RL + 2*4224
STG = 117248
LNT = STG + 2*17408
CH = 40960; KCS = 4160; UB = 33280
XA = 1088; XB = 4384; XSZ = 32*XB
RED1 = XSZ; RED2 = XSZ + 4096; RSL = XSZ + 8192
STASH = XSZ + 8192 + 512
LDS = 161536
SC = 'sc1'
X2S = 8448; H2S = 8448; WGS = 16640; H2N = 0x280000
FL = 0x830000
LOCW = KSL + 16
NJ_GU = 172; NJ_WD = 192; NJ = NJ_GU + NJ_WD

def gen():
    a = Asm()
    a.raw(head(NAME))
    st = Stamper(a, 0, base=83); st.stamp()
    global GST
    GST = st
    load_kernargs(a)
    a.e(f's_cmp_ge_u32 s2, {GRID}')
    a.e('s_cbranch_scc1 KEND')
    a.e('v_and_b32 v1, 63, v0')
    a.e('v_lshrrev_b32 v2, 6, v0')
    a.e('s_nop 0')
    a.e('v_readfirstlane_b32 s3, v2')
    a.e('s_waitcnt lgkmcnt(0)')
    srd(a, 72, 40, 41, 256)
    a.e('s_lshl_b32 s76, s2, 3')
    a.e('s_add_u32 s76, s76, s3')
    a.e('s_cmp_lg_u32 s76, 5')
    a.e('s_cbranch_scc1 NONONCE')
    a.e('s_memrealtime s[76:77]')
    a.e('s_waitcnt lgkmcnt(0)')
    a.e('s_lshl_b32 s76, s76, 6')
    a.e('s_or_b32 s76, s76, 0x40000000')
    a.e('v_mov_b32 v5, s76')
    a.e('v_mov_b32 v6, 0')
    a.e('s_mov_b64 exec, 1')
    a.e('buffer_store_dword v5, v6, s[72:75], 0 offen sc0 sc1')
    a.e('s_mov_b64 exec, -1')
    a.label('NONONCE')
    srd(a, 64, 16, 17, 0x200000)
    a.e('s_lshl_b32 s76, s2, 13')
    a.e('s_lshl_b32 s77, s3, 10')
    a.e('s_add_u32 s76, s76, s77')
    a.e('v_lshlrev_b32 v20, 4, v1')
    a.e('buffer_load_dwordx4 v[24:27], v20, s[64:67], s76 offen')
    a.e('v_lshrrev_b32 v21, 4, v0')
    a.e('v_lshlrev_b32 v21, 10, v21')
    a.e('v_and_b32 v22, 15, v0')
    a.e('v_lshl_add_u32 v21, v22, 4, v21')
    a.e('s_lshr_b32 s76, s2, 2')
    a.e('s_lshl_b32 s76, s76, 15')
    a.e('s_and_b32 s77, s2, 3')
    a.e('s_lshl_b32 s77, s77, 8')
    a.e('s_add_u32 s76, s76, s77')
    a.e('buffer_load_dwordx4 v[108:111], v21, s[64:67], s76 offen')
    srd(a, 44, 18, 19, 131072); srd(a, 48, 20, 21, 131072); srd(a, 52, 22, 23, 131072); srd(a, 56, 24, 25, 131072); srd(a, 60, 26, 27, 1024)
    a.e('s_lshr_b32 s4, s3, 2')
    a.e('s_lshl_b32 s5, s2, 1')
    a.e('s_add_u32 s5, s5, s4')
    a.e('s_lshl_b32 s76, s5, 8')
    a.e('s_lshl_b32 s77, s5, 1')
    a.e('v_and_b32 v3, 127, v0')
    a.e('v_lshlrev_b32 v5, 1, v3')
    a.e('v_lshlrev_b32 v6, 2, v1')
    a.e('v_mov_b32 v7, s77')
    a.e('buffer_load_ushort v10, v5, s[44:47], s76 offen')
    a.e('buffer_load_ushort v11, v5, s[48:51], s76 offen')
    a.e('buffer_load_ushort v12, v5, s[52:55], s76 offen')
    a.e('buffer_load_ushort v13, v5, s[56:59], s76 offen')
    a.e('buffer_load_dword v14, v6, s[52:55], s76 offen')
    a.e('buffer_load_dword v15, v6, s[56:59], s76 offen')
    a.e('buffer_load_ushort v16, v7, s[60:63], 0 offen')
    a.e('s_mov_b32 s80, 0x3f803f80')
    a.e('s_mov_b32 s81, 0x00003f80')
    a.e('s_mov_b32 s82, 0x3f800000')
    G = 32; O = 64
    STG2 = STG + 43*272
    a.e('s_cmp_ge_u32 s3, 6')
    a.e('s_cbranch_scc1 JL_WD')
    a.e('s_cmp_ge_u32 s3, 3')
    a.e('s_cselect_b32 s70, 1, 0')
    a.e('s_cselect_b32 s44, s34, s32')
    a.e('s_cselect_b32 s45, s35, s33')
    a.e('s_and_b32 s45, s45, 0xffff')
    a.e(f's_mov_b32 s46, {512*2752}')
    a.e('s_mov_b32 s47, 0x00020000')
    a.e('s_mul_i32 s71, s70, 3')
    a.e('s_sub_u32 s71, s3, s71')
    a.e('s_mul_i32 s76, s71, 14')
    a.e('s_min_u32 s77, s71, 1')
    a.e('s_add_u32 s76, s76, s77')
    a.e('s_add_u32 s77, s76, 13')
    a.e('s_cmp_eq_u32 s71, 0')
    a.e('s_cselect_b32 s77, 14, s77')
    a.e('v_add_u32 v17, s76, v1')
    a.e('v_min_u32 v17, s77, v17')
    a.e('s_and_b32 s76, s2, 3')
    a.e('s_mul_i32 s76, s76, 43')
    a.e('v_add_u32 v18, s76, v17')
    a.e('s_lshr_b32 s77, s2, 2')
    a.e('v_lshlrev_b32 v23, 4, v18')
    a.e(f's_mul_i32 s76, s77, {8*2752}')
    for j in range(8):
        a.e(f'buffer_load_dwordx4 v[{G+4*j}:{G+4*j+3}], v23, s[44:47], s76 offen')
        if j < 7: a.e('s_add_u32 s76, s76, 2752')
    a.e(f'v_mul_u32_u24 v19, {WGS}, v18')
    a.e('s_lshl_b32 s77, s77, 8')
    a.e('v_add_u32 v19, s77, v19')
    a.e('v_mul_u32_u24 v18, 272, v17')
    a.e('s_lshl_b32 s77, s70, 4')
    a.e(f's_add_u32 s77, s77, {STG}')
    a.e('v_add_u32 v18, s77, v18')
    a.e('s_mov_b32 s70, 32')
    a.e('s_branch JL_DONE')
    a.label('JL_WD')
    srd(a, 44, 36, 37, 1376*1024)
    a.e('s_sub_u32 s71, s3, 6')
    a.e('s_mul_i32 s76, s71, 22')
    a.e('s_add_u32 s77, s76, 20')
    a.e('s_cmp_eq_u32 s71, 0')
    a.e('s_cselect_b32 s77, 21, s77')
    a.e('v_add_u32 v17, s76, v1')
    a.e('v_min_u32 v17, s77, v17')
    a.e('s_mul_i32 s76, s2, 43')
    a.e('v_add_u32 v18, s76, v17')
    a.e('v_lshrrev_b32 v19, 6, v18')
    a.e('v_and_b32 v18, 63, v18')
    a.e('v_lshlrev_b32 v23, 13, v19')
    a.e('v_lshl_add_u32 v23, v18, 4, v23')
    a.e('s_movk_i32 s76, 0x1000')
    for j in range(8):
        so = 's76' if j >= 4 else '0'
        a.e(f'buffer_load_dwordx4 v[{G+4*j}:{G+4*j+3}], v23, s[44:47], {so} offen offset:{(j%4)*1024}')
    a.e('v_lshlrev_b32 v19, 8, v19')
    a.e('v_lshrrev_b32 v23, 1, v18')
    a.e('v_mul_u32_u24 v23, 44032, v23')
    a.e('v_add_u32 v19, v19, v23')
    a.e('v_and_b32 v18, 1, v18')
    a.e('v_lshl_add_u32 v19, v18, 7, v19')
    a.e('v_mul_u32_u24 v18, 144, v17')
    a.e(f'v_add_u32 v18, {STG2}, v18')
    a.e('s_mov_b32 s70, 16')
    a.label('JL_DONE')
    a.e('s_mov_b32 s78, 0x05040100')
    a.e('s_mov_b32 s79, 0x07060302')
    a.e('s_waitcnt vmcnt(15)')
    a.e('v_and_b32 v21, 15, v0')
    a.e(f'v_mul_u32_u24 v21, {4*144}, v21')
    a.e('v_lshrrev_b32 v22, 4, v0')
    a.e('v_lshl_add_u32 v21, v22, 2, v21')
    a.e(f'v_add_u32 v21, {LNT}, v21')
    for c in range(4): a.e(f'ds_write_b32 v21, v{108+c} offset:{144*c}')
    S = 28; TM = 29; Q = 30
    for c in range(4):
        src = '0' if c == 0 else f'v{S}'
        a.e(f'v_dot2_f32_bf16 v{S}, v{24+c}, s80, {src}', dotc=True)
    allreduce64(a, [S], [TM])
    a.e(f'v_mul_f32 v{S}, {fh(-1.0/512)}, v{S}')
    DD = 100
    for c in range(4):
        a.e(f'v_dot2_f32_bf16 v{DD+2*c}, v{24+c}, s81, v{S}')
        a.e(f'v_dot2_f32_bf16 v{DD+2*c+1}, v{24+c}, s82, v{S}')
    a.e(f'v_mul_f32 v{Q}, v{DD}, v{DD}')
    for k in range(1, 8): a.e(f'v_fmac_f32 v{Q}, v{DD+k}, v{DD+k}')
    allreduce64(a, [Q], [TM])
    a.e(f'v_mul_f32 v{Q}, {fh(1.0/512)}, v{Q}')
    a.e(f'v_cvt_pk_bf16_f32 v{S}, v{S}, v{Q}')
    a.e(f'v_and_b32 v{Q}, 0xffff0000, v{S}')
    a.e(f'v_add_f32 v{Q}, {fh(1e-5)}, v{Q}')
    a.e(f'v_cvt_pk_bf16_f32 v{Q}, v{Q}, v{Q}')
    a.e(f'v_and_b32 v{Q}, 0xffff0000, v{Q}')
    a.e(f'v_sqrt_f32 v{Q}, v{Q}')
    a.e(f'v_cvt_pk_bf16_f32 v{Q}, v{Q}, v{Q}')
    a.e(f'v_and_b32 v{Q}, 0xffff0000, v{Q}')
    a.e(f'v_and_b32 v{S}, 0xffff, v{S}')
    a.e(f'v_or_b32 v{S}, v{S}, v{Q}')
    a.e('v_lshlrev_b32 v22, 2, v2')
    a.e(f'v_add_u32 v22, {LNT+9216}, v22')
    a.e(f'ds_write_b32 v22, v{S}')
    a.e('v_lshrrev_b32 v22, 3, v0')
    a.e(f'v_mul_u32_u24 v21, 144, v22')
    a.e('v_and_b32 v31, 7, v0')
    a.e('v_lshl_add_u32 v21, v31, 4, v21')
    a.e(f'v_add_u32 v21, {LNT}, v21')
    a.e(f'v_mul_u32_u24 v22, {X2S}, v22')
    a.e('v_lshl_add_u32 v22, v31, 4, v22')
    a.e(f'v_mov_b32 v31, {LNT+9216}')
    srd_ws(a, 64, X2, 256*X2S); srd_ws(a, 60, ST, 8192)
    a.e('s_waitcnt vmcnt(0)')
    a.e('s_cmp_ge_u32 s3, 6')
    a.e('s_cbranch_scc1 JP_WD')
    for fi in range(8):
        o = O + 4*fi
        for kk in range(4):
            sel = 's79' if fi & 1 else 's78'
            a.e(f'v_perm_b32 v{o+kk}, v{G+4*(2*kk+1)+(fi>>1)}, v{G+4*(2*kk)+(fi>>1)}, {sel}')
        a.e(f'ds_write_b128 v18, v[{o}:{o+3}] offset:{32*fi}')
    a.e('v_and_b32 v18, 0xffffffe0, v18') if False else None
    a.e('s_cmp_ge_u32 s3, 3')
    a.e('s_cbranch_scc1 JP_DONE')
    a.e('ds_write_b32 v18, v19 offset:256')
    a.e('s_branch JP_DONE')
    a.label('JP_WD')
    for fi in range(8):
        o = O + 4*fi
        for kk in range(4):
            sel = 's79' if fi & 1 else 's78'
            a.e(f'v_perm_b32 v{o+kk}, v{G+4*(2*kk+1)+(fi>>1)}, v{G+4*(2*kk)+(fi>>1)}, {sel}')
        a.e(f'ds_write_b128 v18, v[{o}:{o+3}] offset:{16*fi}')
    a.e('ds_write_b32 v18, v19 offset:128')
    a.label('JP_DONE')
    a.e('v_lshrrev_b32 v17, 4, v0')
    a.e('v_mul_u32_u24 v17, 272, v17')
    a.e(f'v_add_u32 v17, {STG}, v17')
    a.e('v_and_b32 v18, 15, v0')
    a.e('v_lshlrev_b32 v18, 4, v18')
    a.e('v_add_u32 v19, v17, v18')
    a.e('v_lshrrev_b32 v23, 3, v0')
    a.e('v_min_u32 v23, 42, v23')
    a.e('v_mul_u32_u24 v23, 144, v23')
    a.e(f'v_add_u32 v23, {STG2}, v23')
    a.e('v_and_b32 v29, 7, v0')
    a.e('v_lshlrev_b32 v29, 4, v29')
    a.e('v_add_u32 v30, v23, v29')
    srd_ws(a, 52, WGU, 172*WGS); srd_ws(a, 56, WD, 32*43*1024)
    a.e('s_cmp_lg_u32 s3, 5')
    a.e('s_cbranch_scc1 NONL')
    a.e('v_mov_b32 v8, 0')
    a.e('buffer_load_dword v9, v8, s[72:75], 0 offen sc0 sc1')
    a.label('NONL')
    a.e('s_waitcnt lgkmcnt(0)')
    a.e('s_barrier')
    a.e('ds_read_b128 v[100:103], v19')
    a.e('ds_read_b32 v108, v17 offset:256')
    a.e(f'ds_read_b128 v[104:107], v19 offset:{32*272}')
    a.e(f'ds_read_b32 v109, v17 offset:{32*272+256}')
    a.e('ds_read_b128 v[24:27], v21')
    a.e('ds_read_b128 v[112:115], v31')
    a.e('ds_read_b128 v[116:119], v31 offset:16')
    a.e('s_and_b32 s76, s2, 3')
    a.e(f's_mul_i32 s76, s76, {64*X2S}')
    a.e('s_lshr_b32 s77, s2, 2')
    a.e('s_lshl_b32 s77, s77, 7')
    a.e('s_add_u32 s76, s76, s77')
    a.e('s_lshl_b32 s77, s2, 5')
    a.e('v_mov_b32 v31, 0')
    a.e('s_waitcnt lgkmcnt(2)')
    a.e(f'buffer_store_dwordx4 v[24:27], v22, s[64:67], s76 offen {SC}')
    a.e('s_cmp_lg_u32 s3, 0')
    a.e('s_cbranch_scc1 NOSTAT')
    a.e('s_waitcnt lgkmcnt(0)')
    a.e('s_mov_b64 exec, 1')
    a.e(f'buffer_store_dwordx4 v[112:115], v31, s[60:63], s77 offen {SC}')
    a.e(f'buffer_store_dwordx4 v[116:119], v31, s[60:63], s77 offen offset:16 {SC}')
    a.e('s_mov_b64 exec, -1')
    a.label('NOSTAT')
    if JOBDBG: st.setk(7); st.stamp(force=True)
    a.e('v_add_u32 v108, v108, v18')
    a.e('v_add_u32 v109, v109, v18')
    a.e('v_mov_b32 v47, 0x7f000000')
    a.e('v_cmp_gt_u32 vcc, 176, v0')
    a.e('v_cndmask_b32 v109, v47, v109, vcc')
    a.label('P2')
    st.setk(1); st.stamp()
    a.e('s_bfe_u32 s6, s3, 0x10001')
    a.e(f's_mov_b32 s64, {fh(512.0)}')
    a.e(f's_mov_b32 s65, {fh(128.0)}')
    a.e(f's_mov_b32 s66, {fh(4.0)}')
    a.e(f's_mov_b32 s67, {fh(64.0)}')
    a.e('s_cmp_eq_u32 s6, 0')
    a.e('s_cmov_b32 s64, 0')
    a.e(f's_cmov_b32 s65, {fh(32.0)}')
    a.e(f's_cmov_b32 s66, {fh(1.0)}')
    a.e(f's_cmov_b32 s67, {fh(16.0)}')
    a.e(f's_mov_b32 s8, {fh(C_HI)}')
    a.e(f's_mov_b32 s9, {fh(C_LO2)}')
    a.e(f's_mul_i32 s10, s4, {KG}')
    a.e(f's_mul_i32 s11, s6, {16*544}')
    a.e('s_add_u32 s11, s11, s10')
    a.e(f's_mul_i32 s12, s6, {32*544}')
    a.e('s_add_u32 s12, s12, s10')
    a.e('v_lshlrev_b32 v20, 2, v3')
    a.e('v_add_u32 v21, s11, v20')
    a.e('v_add_u32 v22, s12, v20')
    for r in (10, 11, 12, 13, 16): a.e(f'v_lshlrev_b32 v{r}, 16, v{r}')
    a.e('v_and_b32 v14, 0x7fff7fff, v14')
    a.e('v_and_b32 v15, 0x7fff7fff, v15')
    a.e('v_pk_max_u16 v14, v14, v15')
    a.e('v_lshrrev_b32 v15, 16, v14')
    a.e('v_and_b32 v14, 0xffff, v14')
    a.e('v_max_u32 v14, v14, v15')
    def expb(dst, x, t1, t2):
        a.e(f'v_mul_f32 v{t1}, s8, v{x}')
        a.e(f'v_mul_f32 v{t2}, s9, v{x}')
        a.e(f'v_exp_f32 v{t1}, v{t1}')
        a.e(f'v_fma_f32 v{t1}, v{t1}, v{t2}, v{t1}')
        a.e(f'v_cvt_pk_bf16_f32 v{t1}, v{t1}, v{t1}')
        a.e(f'v_and_b32 v{dst}, 0xffff0000, v{t1}')
    expb(16, 16, 24, 25); expb(10, 10, 26, 27)
    allreduce64(a, [14], [15], op='v_max_u32')
    for ins in ('v_lshrrev_b32 v14, 7, v14', 'v_max_u32 v14, 1, v14', 'v_min_u32 v14, 0xfd, v14', 'v_lshrrev_b32 v15, 23, v16',
                'v_max_u32 v15, 1, v15', 'v_min_u32 v15, 0xfd, v15', 'v_sub_u32 v24, 254, v14', 'v_lshlrev_b32 v24, 23, v24',
                'v_sub_u32 v25, 254, v15', 'v_lshlrev_b32 v25, 23, v25', 'v_lshlrev_b32 v14, 23, v14', 'v_lshlrev_b32 v15, 23, v15',
                'v_mul_f32 v14, v14, v15', 'v_add_f32 v14, v14, v14', 'v_mul_f32 v12, v12, v24', 'v_mul_f32 v13, v13, v24',
                'v_mul_f32 v25, v16, v25', 'v_mul_f32 v12, v12, v25', 'v_mul_f32 v13, v13, v25', 'v_mul_f32 v10, v10, v16',
                f'v_mul_f32 v10, {fh(-LOG2E)}, v10', 'v_mul_f32 v11, v11, v16', f'v_mul_f32 v11, {fh(1.0/(2*math.pi))}, v11'):
        a.e(ins)
    a.e('s_lshl_b32 s13, s4, 2')
    a.e(f's_add_u32 s13, s13, {KSL}')
    a.e('v_mov_b32 v7, s13')
    a.e('ds_write_b32 v7, v14')
    PW = 5
    def spin_head(tag):
        a.e('s_mov_b32 s15, 0x40000')
        a.label(f'WL_{tag}')
    def spin_tail(tag):
        a.e('s_sub_u32 s15, s15, 1')
        a.e('s_cmp_eq_u32 s15, 0')
        a.e(f's_cbranch_scc1 WD_{tag}')
        a.e('s_and_b64 vcc, vcc, exec')
        a.e(f's_cbranch_vccz WD_{tag}')
        if SLEEP: a.e(f's_sleep {SLEEP}')
        a.e(f's_branch WL_{tag}')
        a.label(f'WD_{tag}')
        a.e('s_mov_b64 exec, -1')
    def do_signal(val, tag):
        a.e(f's_cmp_lg_u32 s3, {PW}')
        a.e(f's_cbranch_scc1 SIG_{tag}')
        a.e('v_mov_b32 v6, 0')
        if val == 1:
            a.e('s_mov_b64 exec, 1')
            a.e('v_mov_b32 v5, v9')
            a.e('v_cmp_ne_u32 vcc, 0, v5')
            a.e('s_and_b64 vcc, vcc, exec')
            a.e('s_cbranch_vccnz WD_N')
            spin_head('N')
            a.e('buffer_load_dword v5, v6, s[72:75], 0 offen sc0 sc1')
            a.e('s_waitcnt vmcnt(0)')
            a.e('v_cmp_eq_u32 vcc, 0, v5')
            spin_tail('N')
            a.e('v_readfirstlane_b32 s25, v5')
            a.e('s_nop 3')
        a.e(f's_add_u32 s14, s25, {val}')
        a.e('s_add_u32 s14, s14, s27')
        a.e('v_mov_b32 v5, s14')
        a.e('s_mov_b64 exec, 1')
        a.e(f'buffer_store_dword v5, v6, s[76:79], s24 offen sc0 sc1')
        a.e('s_mov_b64 exec, -1')
        a.label(f'SIG_{tag}')
    def do_wait(val, nlanes, tag, off_sgpr=None):
        a.e(f's_cmp_lg_u32 s3, {PW}')
        a.e(f's_cbranch_scc1 WT_{tag}')
        a.e('v_lshlrev_b32 v5, 7, v1')
        a.e(f's_add_u32 s14, s25, {val}')
        grp = nlanes < 64
        if grp: a.e(f's_mov_b64 exec, {hx((1 << (4 if FPL == 4 else 16)) - 1)}')
        if FPL == 1 and not grp:
            a.e('v_add_u32 v20, 8192, v5'); a.e('v_add_u32 v21, 16384, v5'); a.e('v_add_u32 v22, 24576, v5')
        spin_head(tag)
        so = off_sgpr if off_sgpr else '0'
        if FPL == 4:
            a.e(f'buffer_load_dwordx4 v[16:19], v5, s[76:79], {so} offen {POLLSC}')
        elif grp:
            a.e(f'buffer_load_dword v16, v5, s[76:79], {so} offen {POLLSC}')
            a.e('s_waitcnt vmcnt(0)')
            for k in range(1, 4): a.e(f'v_mov_b32 v{16+k}, v16')
        else:
            for k, r in enumerate((5, 20, 21, 22)):
                a.e(f'buffer_load_dword v{16+k}, v{r}, s[76:79], 0 offen {POLLSC}')
        a.e('s_waitcnt vmcnt(0)')
        for k in range(4): a.e(f'v_subrev_u32 v{16+k}, s25, v{16+k}')
        for k in range(4): a.e(f'v_and_b32 v{52+k}, 0xffffffc7, v{16+k}')
        for k in range(4): a.e(f'v_subrev_u32 v{52+k}, {val}, v{52+k}')
        a.e('v_max3_u32 v52, v52, v53, v54')
        a.e('v_max_u32 v52, v52, v55')
        a.e(f'v_cmp_lt_u32 vcc, {4-val}, v52')
        spin_tail(tag)
        if tag == 'A':
            for k in range(4): a.e(f'v_and_b32 v{16+k}, 0x38, v{16+k}')
            for k in range(4): a.e(f'v_cmp_ne_u32 s[{64+2*k}:{65+2*k}], s27, v{16+k}')
            a.e('s_lshr_b32 s14, s18, 2')
            for k in range(1, 4):
                a.e(f's_cmp_eq_u32 s14, {k}')
                a.e(f's_cselect_b64 s[64:65], s[{64+2*k}:{65+2*k}], s[64:65]')
            a.e('s_and_b32 s14, s18, 3')
            a.e('s_lshl_b32 s14, s14, 4')
            a.e('s_lshr_b64 s[64:65], s[64:65], s14')
            a.e('s_and_b32 s64, s64, 0xffff')
            a.e('s_cmp_eq_u32 s64, 0')
            a.e('s_cselect_b32 s14, 1, 0')
            a.e('v_mov_b32 v5, s14')
            a.e(f'v_mov_b32 v6, {LOCW}')
            a.e('ds_write_b32 v6, v5')
            a.e('s_waitcnt lgkmcnt(0)')
        a.label(f'WT_{tag}')
    a.e('s_and_b32 s16, s2, 7')
    a.e('s_lshr_b32 s17, s2, 3')
    if MAPX:
        a.e('s_lshl_b32 s18, s16, 1')
        a.e('s_lshr_b32 s19, s17, 4')
        a.e('s_add_u32 s18, s18, s19')
        a.e('s_and_b32 s19, s17, 15')
    else:
        a.e('s_and_b32 s18, s16, 1')
        a.e('s_lshl_b32 s18, s18, 3')
        a.e('s_and_b32 s19, s17, 7')
        a.e('s_add_u32 s18, s18, s19')
        a.e('s_lshr_b32 s19, s16, 1')
        a.e('s_lshl_b32 s19, s19, 2')
        a.e('s_lshr_b32 s20, s17, 3')
        a.e('s_add_u32 s19, s19, s20')
    a.e('s_lshl_b32 s24, s18, 4')
    a.e('s_add_u32 s24, s24, s19')
    if FPL == 4:
        a.e('s_lshr_b32 s26, s24, 2')
        a.e('s_lshl_b32 s26, s26, 7')
        a.e('s_and_b32 s24, s24, 3')
        a.e('s_lshl_b32 s24, s24, 2')
        a.e('s_add_u32 s24, s24, s26')
    else:
        a.e('s_lshl_b32 s24, s24, 7')
    a.e('s_getreg_b32 s27, hwreg(HW_REG_XCC_ID, 0, 3)')
    a.e('s_lshl_b32 s27, s27, 3')
    FLS = 76
    srd_ws(a, FLS, FL, 32768)
    if P2DBG: st.setk(7); st.stamp(force=True)
    a.e('s_waitcnt vmcnt(0)')
    if P2DBG: st.setk(8); st.stamp(force=True)
    a.e('s_barrier')
    if P2DBG: st.setk(9); st.stamp(force=True)
    do_signal(1, 'A')
    if P2DBG: st.setk(10); st.stamp(force=True); st.setk(2)
    a.e(f'buffer_store_dwordx4 v[100:103], v108, s[52:55], 0 offen {SC}')
    a.e(f'buffer_store_dwordx4 v[104:107], v109, s[52:55], 0 offen {SC}')
    def cexp(dst, sp, conj, t):
        a.e(f'v_mul_f32 v{t}, s{sp}, v10')
        a.e(f'v_mul_f32 v{t+1}, s{sp}, v11')
        a.e(f'v_exp_f32 v{t}, v{t}')
        a.e(f'v_fract_f32 v{t+1}, v{t+1}')
        a.e(f'v_cos_f32 v{dst}, v{t+1}')
        a.e(f'v_sin_f32 v{dst+1}, v{t+1}')
        a.e(f'v_mul_f32 v{dst}, v{dst}, v{t}')
        if conj: a.e(f'v_mul_f32_e64 v{dst+1}, v{dst+1}, -v{t}')
        else: a.e(f'v_mul_f32 v{dst+1}, v{dst+1}, v{t}')
    def cmul(x, w, t):
        a.e(f'v_pk_mul_f32 v[{t}:{t+1}], v[{x}:{x+1}], v[{w}:{w+1}] op_sel:[0,0] op_sel_hi:[0,1]')
        a.e(f'v_pk_fma_f32 v[{x}:{x+1}], v[{x}:{x+1}], v[{w}:{w+1}], v[{t}:{t+1}] op_sel:[1,1,0] op_sel_hi:[1,0,1] neg_lo:[0,1,0]')
    X = 30; YA = 32; YB = 34; WX = 36; WY = 38; T0 = 40
    cexp(X, 64, False, T0); cexp(WX, 65, False, T0+2); cexp(WY, 66, True, T0+4); cexp(YB, 67, True, T0+6)
    cmul(X, 12, T0)
    a.e(f'v_mov_b32 v{YA}, 1.0')
    a.e(f'v_mov_b32 v{YA+1}, 0')
    P = 50
    for r in range(16):
        p = P + 3*(r % 2)
        a.e(f'v_cvt_pk_f16_f32 v{p}, v{X}, v{X+1}')
        a.e(f'v_cvt_pk_f16_f32 v{p+1}, v{YA}, v{YA+1}')
        a.e(f'v_cvt_pk_f16_f32 v{p+2}, v{YB}, v{YB+1}')
        a.e(f'ds_write_b32 v21, v{p} offset:{r*544}')
        a.e(f'ds_write_b32 v22, v{p+1} offset:{32*544 + r*544}')
        a.e(f'ds_write_b32 v22, v{p+2} offset:{32*544 + (16+r)*544}')
        if r < 15:
            cmul(X, WX, T0); cmul(YA, WY, T0+2); cmul(YB, WY, T0+4)
    a.e('s_and_b32 s7, s3, 1')
    a.e('v_and_b32 v3, 15, v1')
    a.e('v_lshrrev_b32 v4, 4, v1')
    a.e('v_mul_u32_u24 v7, 544, v3')
    a.e('v_lshl_add_u32 v7, v4, 4, v7')
    a.e(f's_mul_i32 s13, s7, {16*544}')
    a.e('s_add_u32 s13, s13, s12')
    a.e('v_add_u32 v8, s13, v7')
    a.e('v_add_u32 v9, s11, v7')
    a.e('s_lshl_b32 s13, s6, 10')
    a.e('s_lshl_b32 s14, s7, 5')
    a.e('s_add_u32 s13, s13, s14')
    a.e('s_lshl_b32 s14, s4, 11')
    a.e('s_add_u32 s13, s13, s14')
    a.e(f's_add_u32 s13, s13, {TBL}')
    a.e('v_lshlrev_b32 v20, 6, v3')
    a.e('v_lshl_add_u32 v20, v4, 3, v20')
    a.e('v_add_u32 v20, s13, v20')
    a.e('s_waitcnt lgkmcnt(0) vmcnt(0)')
    st.stamp()
    a.e('s_barrier')
    do_signal(2, 'W')
    a.e('s_and_b32 s13, s2, 15')
    a.e('s_lshl_b32 s13, s13, 2')
    FA = 64; FB = 96; AC = 60
    for ks in range(8):
        a.e(f'ds_read_b128 v[{FA+4*ks}:{FA+4*ks+3}], v8 offset:{32*544 + 64*ks}')
        a.e(f'ds_read_b128 v[{FB+4*ks}:{FB+4*ks+3}], v9 offset:{64*ks}')
    for ks in range(8):
        a.e(f's_waitcnt lgkmcnt({14-2*ks})')
        src = '0' if ks == 0 else f'v[{AC}:{AC+3}]'
        a.e(f'v_mfma_f32_16x16x32_f16 v[{AC}:{AC+3}], v[{FA+4*ks}:{FA+4*ks+3}], v[{FB+4*ks}:{FB+4*ks+3}], {src}')
    a.e('v_and_b32 v23, 255, v0')
    a.e('v_lshlrev_b32 v21, 3, v23')
    a.e('v_sub_u32 v21, 2047, v21')
    I = 30
    for i in range(8): a.e(f'v_subrev_u32 v{I+i}, {i}, v21')
    for i in range(8): a.e(f'v_cvt_f32_u32 v{I+i}, v{I+i}')
    for i in range(0, 8, 2): a.e(f'v_cvt_pk_bf16_f32 v{40+i//2}, v{I+i}, v{I+i+1}')
    for i in range(0, 8, 2):
        a.e(f'v_lshlrev_b32 v{I+i}, 16, v{40+i//2}')
        a.e(f'v_and_b32 v{I+i+1}, 0xffff0000, v{40+i//2}')
    for i in range(8): a.e(f'v_cvt_u32_f32 v{I+i}, v{I+i}')
    a.e('s_lshl_b32 s14, s4, 11')
    a.e(f's_add_u32 s14, s14, {TBL}')
    for i in range(8):
        a.e(f'v_lshrrev_b32 v{40+i}, 2, v{I+i}')
        a.e(f'v_add_u32 v{40+i}, 384, v{40+i}')
        a.e(f'v_min_u32 v{I+i}, v{I+i}, v{40+i}')
        a.e(f'v_lshl_add_u32 v{I+i}, v{I+i}, 1, s14')
    a.e(f'v_cvt_pk_f16_f32 v50, v{AC}, v{AC+1}')
    a.e(f'v_cvt_pk_f16_f32 v51, v{AC+2}, v{AC+3}')
    a.e('ds_write_b64 v20, v[50:51]')
    a.e('s_mul_i32 s20, s19, 11')
    a.e('s_mul_i32 s21, s19, 10')
    a.e('s_add_u32 s21, s21, 12')
    a.e('s_min_u32 s20, s20, s21')
    a.e('s_cmp_lt_u32 s19, 12')
    a.e('s_cselect_b32 s21, 3, 2')
    a.e('s_add_u32 s22, s20, s3')
    a.e('s_add_u32 s23, s22, 8')
    a.e('s_waitcnt lgkmcnt(0)')
    do_wait(1, 64, 'A')
    a.e('s_barrier')
    st.stamp()
    a.e(f'v_mov_b32 v5, {LOCW}')
    a.e('ds_read_b32 v5, v5')
    a.e('s_waitcnt lgkmcnt(0)')
    a.e('v_readfirstlane_b32 s26, v5')
    srd_ws(a, 44, X2, 256*X2S); srd_ws(a, 48, ST, 8192); srd(a, 60, 28, 29, 1024); srd_ws(a, 64, H2N, 256*H2S); srd_ws(a, 52, WGU, 172*WGS)
    a.e(f's_mul_i32 s68, s2, {H2S}')
    a.e('s_lshl_b32 s69, s2, 2')
    a.e(f's_mul_i32 s70, s2, {X2S}')
    XR = 8; UBF = 12; SR = 16
    a.e('v_lshlrev_b32 v28, 4, v0')
    a.e('v_mov_b32 v5, 0')
    a.e(f'buffer_load_dwordx4 v[{XR}:{XR+3}], v28, s[44:47], s70 offen {SC}')
    a.e(f'buffer_load_dwordx4 v[{SR}:{SR+3}], v28, s[48:51], 0 offen {SC}')
    a.e('buffer_load_dword v29, v5, s[60:63], s69 offen')
    a.e('v_lshlrev_b32 v7, 4, v1')
    def wloads(tile_s, abase):
        a.e(f's_mul_i32 s14, {tile_s}, {WGS}')
        for k4 in range(4):
            for k in range(4):
                r = abase + 4*(4*k4+k)
                a.e(f'buffer_load_dwordx4 a[{r}:{r+3}], v7, s[52:55], s14 offen offset:{k*1024} {SC}')
            if k4 < 3: a.e('s_add_u32 s14, s14, 4096')
    for i in range(8): a.e(f'ds_read_u16 v{40+i}, v{I+i}')
    a.e('s_mul_i32 s14, s4, 4224')
    a.e(f's_add_u32 s14, s14, {RL}')
    a.e('v_lshl_add_u32 v21, v23, 4, s14')
    for k in range(4): a.e(f'v_mov_b32 v{56+k}, 0')
    a.e('s_waitcnt lgkmcnt(0)')
    for k in range(4): a.e(f'v_lshl_or_b32 v{52+k}, v{41+2*k}, 16, v{40+2*k}')
    a.e('ds_write_b128 v21, v[52:55]')
    a.e('v_cmp_gt_u32 vcc, 8, v23')
    a.e('s_and_saveexec_b64 s[30:31], vcc')
    a.e('ds_write_b128 v21, v[56:59] offset:4096')
    a.e('s_mov_b64 exec, s[30:31]')
    a.e(f's_mul_i32 s14, s4, {CH}')
    a.e('v_lshl_add_u32 v22, v23, 4, s14')
    a.e('v_cmp_gt_u32 vcc, 160, v23')
    a.e('s_and_saveexec_b64 s[30:31], vcc')
    a.e(f'ds_write_b128 v22, v[56:59] offset:{UB}')
    a.e('s_mov_b64 exec, s[30:31]')
    a.e('s_waitcnt lgkmcnt(0)')
    a.e('s_barrier')
    def copies(vr, roff, vw, woff):
        A = 32; B = 40; TA = 48; TB2 = 56
        a.e(f'ds_read_b128 v[{A}:{A+3}], v{vr} offset:{roff}')
        a.e(f'ds_read_b128 v[{A+4}:{A+7}], v{vr} offset:{roff+16}')
        a.e('s_waitcnt lgkmcnt(0)')
        for k in range(6): a.e(f'v_mov_b32 v{B+k}, v{A+k+1}')
        for k in range(6):
            a.e(f'v_alignbit_b32 v{TA+k}, v{A+k+1}, v{A+k}, 16')
            a.e(f'v_alignbit_b32 v{TB2+k}, v{A+k+2}, v{A+k+1}, 16')
        src = {0: A, 4: A+2, 2: B, 6: B+2, 1: TA, 5: TA+2, 3: TB2, 7: TB2+2}
        for s in (0, 4, 2, 6, 1, 5, 3, 7):
            a.e(f'ds_write_b128 v{vw}, v[{src[s]}:{src[s]+3}] offset:{woff + s*KCS}')
    copies(21, 0, 22, 0)
    a.e('v_cmp_gt_u32 vcc, 4, v23')
    a.e('s_and_saveexec_b64 s[30:31], vcc')
    a.e('s_cbranch_execz NOX')
    a.e('s_waitcnt lgkmcnt(0)')
    copies(21, 4096, 22, 4096)
    a.label('NOX')
    a.e('s_mov_b64 exec, s[30:31]')
    a.e('s_waitcnt vmcnt(0)')
    T = 64
    for l in range(4):
        a.e(f'v_lshlrev_b32 v{T+l}, 16, v{SR+l}')
        a.e(f'v_and_b32 v{T+4+l}, 0xffff0000, v{SR+l}')
    for l in range(4): a.e(f'v_rcp_f32 v{T+4+l}, v{T+4+l}')
    for l in range(4):
        a.e(f'v_dot2_f32_bf16 v{T+8+2*l}, v{XR+l}, s81, v{T+l}')
        a.e(f'v_dot2_f32_bf16 v{T+9+2*l}, v{XR+l}, s82, v{T+l}')
    for l in range(4): a.e(f'v_cvt_pk_bf16_f32 v{T+l}, v{T+8+2*l}, v{T+9+2*l}')
    for l in range(4):
        a.e(f'v_lshlrev_b32 v{T+8+2*l}, 16, v{T+l}')
        a.e(f'v_and_b32 v{T+9+2*l}, 0xffff0000, v{T+l}')
    for l in range(4):
        a.e(f'v_mul_f32 v{T+8+2*l}, v{T+8+2*l}, v{T+4+l}')
        a.e(f'v_mul_f32 v{T+9+2*l}, v{T+9+2*l}, v{T+4+l}')
    for l in range(4): a.e(f'v_cvt_pk_bf16_f32 v{UBF+l}, v{T+8+2*l}, v{T+9+2*l}')
    for l in range(4):
        a.e(f'v_lshlrev_b32 v{T+8+2*l}, 16, v{UBF+l}')
        a.e(f'v_and_b32 v{T+9+2*l}, 0xffff0000, v{UBF+l}')
    for c in range(2):
        for k in range(2):
            a.e(f'v_cvt_pk_f16_f32 v{T+2*c+k}, v{T+8+4*k+c}, v{T+10+4*k+c}')
    a.e('v_lshrrev_b32 v24, 3, v0')
    a.e('v_mul_u32_u24 v24, 80, v24')
    a.e('v_and_b32 v25, 7, v0')
    a.e('v_lshl_add_u32 v24, v25, 3, v24')
    a.e(f'v_add_u32 v25, {CH}, v24')
    a.e(f'ds_write_b64 v24, v[{T}:{T+1}] offset:{UB+32*80}')
    a.e(f'ds_write_b64 v25, v[{T+2}:{T+3}] offset:{UB+32*80}')
    a.e('v_lshlrev_b32 v27, 4, v1')
    a.e(f's_mul_i32 s60, s22, {WGS}')
    a.e(f's_mul_i32 s61, s23, {WGS}')
    a.e('s_cmp_ge_u32 s3, s21')
    a.e(f's_cselect_b32 s61, {hx(0x7f000000)}, s61')
    a.e('s_and_b32 s6, s3, 3')
    a.e('v_and_b32 v6, 31, v1')
    a.e('v_lshrrev_b32 v7, 5, v1')
    a.e('v_and_b32 v26, 7, v6')
    a.e('v_sub_u32 v26, 7, v26')
    a.e(f'v_mul_u32_u24 v26, {KCS}, v26')
    a.e('v_lshrrev_b32 v25, 3, v6')
    a.e('v_sub_u32 v25, 3, v25')
    a.e('v_add_u32 v25, v25, v7')
    a.e('v_lshl_add_u32 v26, v25, 4, v26')
    a.e('s_sub_u32 s7, 3, s6')
    a.e('s_lshl_b32 s13, s7, 6')
    a.e('s_add_u32 s13, s13, s14')
    a.e('v_add_u32 v26, s13, v26')
    a.e('v_mul_u32_u24 v30, 80, v6')
    a.e('v_lshl_add_u32 v30, v7, 4, v30')
    a.e('s_mul_i32 s13, s7, 80')
    a.e('s_add_u32 s13, s13, s14')
    a.e('v_add_u32 v30, s13, v30')
    a.e('v_mul_u32_u24 v31, 144, v6')
    a.e('v_lshl_add_u32 v31, v7, 4, v31')
    a.e('s_mul_i32 s13, s6, 9216')
    a.e('s_add_u32 s13, s13, s14')
    a.e('v_add_u32 v31, s13, v31')
    a.e('v_lshrrev_b32 v20, 3, v0')
    a.e('v_min_u32 v20, 42, v20')
    a.e('v_mul_u32_u24 v20, 144, v20')
    a.e(f'v_add_u32 v20, {STG2}, v20')
    a.e('v_and_b32 v21, 7, v0')
    a.e('v_lshlrev_b32 v21, 4, v21')
    a.e('v_add_u32 v22, v20, v21')
    a.e('ds_read_b128 v[32:35], v22')
    a.e('ds_read_b32 v36, v20 offset:128')
    srd_ws(a, 56, WD, 32*43*1024)
    a.e('v_mov_b32 v37, 0x7f000000')
    a.e('v_cmp_gt_u32 vcc, 344, v0')
    a.e('s_waitcnt lgkmcnt(0)')
    a.e('v_add_u32 v36, v36, v21')
    a.e('v_cndmask_b32 v36, v37, v36, vcc')
    do_wait(2, 64, 'W')
    a.e(f'buffer_store_dwordx4 v[32:35], v36, s[56:59], 0 offen {SC}')
    st.stamp()
    a.e('s_barrier')
    ACC0 = 96; ACC1 = 112; F = [32, 64]
    NU = 8
    def rd(i, k):
        base = F[i % 2] + 4*k
        dst = f'v[{base}:{base+3}]'
        h = k // 4; kk = k % 4
        if kk == 0:   a.e(f'ds_read_b128 {dst}, v26 offset:{32*(126-8*i+h)-192}')
        elif kk == 1: a.e(f'ds_read_b128 {dst}, v30 offset:{UB + (29-4*i)*80 + 32*h}')
        elif kk == 2: a.e(f'ds_read_b128 {dst}, v30 offset:{UB + (61-4*i)*80 + 32*h}')
        else:         a.e(f'ds_read_b128 {dst}, v26 offset:{32*(62-8*i+h)-192}')
    def fr(i, k):
        base = F[i % 2] + 4*k
        return f'v[{base}:{base+3}]'
    for k in range(8): rd(0, k)
    for i in range(NU):
        last = (i == NU-1)
        waits = [6, 7, 8, 8, 9, 8] if not last else [6, 5, 4, 2, 1, 0]
        mf = [(ACC0, 0, 1), (ACC1, 0, 2), (ACC1, 3, 1), (ACC0, 4, 5), (ACC1, 4, 6), (ACC1, 7, 5)]
        for j, (acc, ka, kb) in enumerate(mf):
            a.e(f's_waitcnt lgkmcnt({waits[j]})')
            first = (i == 0 and j < 2)
            src = '0' if first else f'v[{acc}:{acc+15}]'
            a.e(f'v_mfma_f32_32x32x16_f16 v[{acc}:{acc+15}], {fr(i,ka)}, {fr(i,kb)}, {src}')
            if not last and j < 4:
                rd(i+1, 2*j); rd(i+1, 2*j+1)
            if j in (1, 4):
                ks = 2*i + (0 if j == 1 else 1)
                r = 4*ks
                a.e(f'buffer_load_dwordx4 a[{r}:{r+3}], v27, s[52:55], s60 offen offset:{(ks%4)*1024} {SC}')
            if j == 5 and i % 2 == 1 and not last:
                a.e('s_add_u32 s60, s60, 4096')
    st.stamp()
    a.e('s_barrier')
    for cg, acc in ((0, ACC0), (1, ACC1)):
        for i4 in range(4):
            a.e(f'ds_write_b128 v31, v[{acc+4*i4}:{acc+4*i4+3}] offset:{cg*4608 + 32*i4}')
    a.e('v_lshrrev_b32 v6, 3, v0')
    a.e('v_mul_u32_u24 v6, 144, v6')
    a.e('v_and_b32 v7, 7, v0')
    a.e('v_lshl_add_u32 v6, v7, 4, v6')
    a.e(f'v_add_u32 v7, {CH}, v6')
    a.e(f'v_mov_b32 v20, {KSL}')
    a.e('v_lshlrev_b32 v22, 16, v29')
    a.e('v_and_b32 v23, 0xffff0000, v29')
    a.e('s_waitcnt lgkmcnt(0)')
    a.e('s_barrier')
    PR = 32
    a.e('ds_read_b64 v[24:25], v20')
    for c in range(2):
        for p in range(4):
            r = PR + 16*c + 4*p
            a.e(f'ds_read_b128 v[{r}:{r+3}], v{6+c} offset:{p*9216}')
    W = 64
    for l in range(4):
        a.e(f'v_lshlrev_b32 v{W+2*l}, 16, v{UBF+l}')
        a.e(f'v_and_b32 v{W+2*l+1}, 0xffff0000, v{UBF+l}')
    for l in range(4):
        a.e(f'v_mul_f32 v{W+2*l}, v{W+2*l}, v22')
        a.e(f'v_mul_f32 v{W+2*l+1}, v{W+2*l+1}, v23')
    for l in range(4): a.e(f'v_cvt_pk_bf16_f32 v{W+8+l}, v{W+2*l}, v{W+2*l+1}')
    for l in range(4):
        a.e(f'v_lshlrev_b32 v{W+2*l}, 16, v{W+8+l}')
        a.e(f'v_and_b32 v{W+2*l+1}, 0xffff0000, v{W+8+l}')
    a.e('s_waitcnt lgkmcnt(0)')
    for c in range(2):
        r = PR + 16*c
        for l in range(4):
            a.e(f'v_add_f32 v{r+l}, v{r+l}, v{r+4+l}')
            a.e(f'v_add_f32 v{r+8+l}, v{r+8+l}, v{r+12+l}')
        for l in range(4): a.e(f'v_add_f32 v{r+l}, v{r+l}, v{r+8+l}')
        for l in range(4): a.e(f'v_mul_f32 v{r+l}, v{r+l}, v{24+c}')
    for l in range(4): a.e(f'v_cvt_pk_bf16_f32 v{W+8+l}, v{PR+l}, v{PR+16+l}')
    for l in range(4):
        a.e(f'v_lshlrev_b32 v{PR+2*l}, 16, v{W+8+l}')
        a.e(f'v_and_b32 v{PR+2*l+1}, 0xffff0000, v{W+8+l}')
    for l in range(8): a.e(f'v_add_f32 v{W+l}, v{W+l}, v{PR+l}')
    for l in range(4): a.e(f'v_cvt_pk_bf16_f32 v{W+8+l}, v{W+2*l}, v{W+2*l+1}')
    for l in range(4):
        a.e(f'v_lshlrev_b32 v{W+2*l}, 16, v{W+8+l}')
        a.e(f'v_and_b32 v{W+2*l+1}, 0xffff0000, v{W+8+l}')
        a.e(f'v_lshlrev_b32 v{PR+2*l}, 16, v{XR+l}')
        a.e(f'v_and_b32 v{PR+2*l+1}, 0xffff0000, v{XR+l}')
    for l in range(8): a.e(f'v_add_f32 v{W+l}, v{W+l}, v{PR+l}')
    for l in range(4): a.e(f'v_cvt_pk_bf16_f32 v{W+8+l}, v{W+2*l}, v{W+2*l+1}')
    a.e(f'buffer_store_dwordx4 v[{W+8}:{W+11}], v28, s[64:67], s68 offen {SC}')
    a.e('s_mov_b32 s6, s18'); a.e('s_mov_b32 s7, s19'); a.e('s_mov_b32 s9, s21'); a.e('s_mov_b32 s10, s22'); a.e('s_mov_b32 s11, s23')
    srd_ws(a, 44, H2N, 256*H2S); srd_ws(a, 56, HF, 128*172*256); srd_ws(a, 48, WD, 32*43*1024)
    a.e('v_and_b32 v3, 31, v1')
    a.e('v_lshrrev_b32 v4, 5, v1')
    a.e('v_lshl_add_u32 v5, v2, 1, v4')
    a.e(f'v_mul_u32_u24 v8, {4*H2S}, v5')
    a.e('v_lshl_add_u32 v8, v3, 4, v8')
    a.e('s_lshl_b32 s12, s6, 9')
    a.e('v_add_u32 v8, s12, v8')
    a.e('v_mov_b32 v62, v5')
    a.e('s_and_b32 s13, s2, 15')
    a.e('s_lshl_b32 s13, s13, 2')
    a.e('s_waitcnt vmcnt(0)')
    st.stamp()
    if JOBDBG or P2DBG: st.off = True
    a.e('s_barrier')
    do_signal(3, 'B')
    a.e('s_cmp_ge_u32 s3, s21')
    a.e('s_cbranch_scc1 NOWB')
    a.e('v_lshlrev_b32 v7, 4, v1')
    wloads('s23', 64)
    a.label('NOWB')
    do_wait(3, 64, 'B')
    a.e('s_barrier')
    st.stamp()
    HV = 64
    for i in range(4):
        for c in range(4):
            a.e(f's_mov_b32 s13, {(64*i + c)*H2S}')
            r = HV + 16*i + 4*c
            a.e(f'buffer_load_dwordx4 v[{r}:{r+3}], v8, s[44:47], s13 offen {SC}')
    a.e('v_mov_b32 v5, v62')
    a.e('s_and_b32 s4, s7, 1')
    a.e('s_lshl_b32 s5, s6, 1')
    a.e('s_add_u32 s5, s5, s4')
    a.e('s_lshr_b32 s4, s7, 1')
    a.e(f's_mul_i32 s8, s4, {4*43*1024}')
    a.e('s_lshl_b32 s12, s3, 10')
    a.e('s_add_u32 s8, s8, s12')
    for k in range(4): a.e(f's_add_u32 s{60+k}, s8, {k*43*1024}')
    a.e(f's_mul_i32 s8, s5, {4*44032}')
    a.e('s_add_u32 s8, s8, s12')
    for k in range(4): a.e(f's_add_u32 s{64+k}, s8, {k*44032}')
    ln2(a, st)
    a.e('s_cmp_lt_u32 s3, s9')
    a.e('s_cbranch_scc1 G1_TWO')
    a.e('s_cmp_lt_u32 s3, 3')
    a.e('s_cbranch_scc1 G1_16')
    gemm1(a, 1, 5); a.e('s_branch G1_DONE')
    a.label('G1_16')
    gemm1(a, 1, 6); a.e('s_branch G1_DONE')
    a.label('G1_TWO')
    gemm1(a, 2, 6)
    a.label('G1_DONE')
    if G1DBG:
        kk0 = st.k; st.setk(3); st.stamp(force=True); st.setk(kk0)
        a.e('s_add_u32 s87, s83, s26')
    a.e(f's_lshl_b32 s12, s6, {9 if FPL == 4 else 11}')
    a.e('s_waitcnt vmcnt(0)')
    st.stamp()
    a.e('s_barrier')
    do_signal(4, 'C')
    srd_ws(a, 48, HF, 128*172*256); srd(a, 56, 38, 39, 0x200000)
    do_wait(4, 4, 'C', off_sgpr='s12')
    a.e('v_lshlrev_b32 v3, 4, v1')
    a.e('v_lshl_add_u32 v7, v2, 14, v3')
    a.e('s_barrier')
    st.stamp()
    def bfr(j, k):
        jj = j % 5
        return f'v[{48+16*jj+4*k}:{48+16*jj+4*k+3}]'
    def accr(t):
        return f'a[{96+4*t}:{96+4*t+3}]' if t < 8 else f'v[{16+4*(t-8)}:{16+4*(t-8)+3}]'
    def g2body(n):
        def bl(j):
            for k in range(4):
                a.e(f'buffer_load_dwordx4 {bfr(j,k)}, v3, s[48:51], s{64+k} offen {SC}')
            for k in range(4): a.e(f's_add_u32 s{64+k}, s{64+k}, 8192')
        for j in range(5): bl(j)
        issued = 5
        for j in range(n):
            a.e(f's_waitcnt vmcnt({4*(issued-j-1)})')
            if TAILDBG and j == 0: st.setk(1); st.stamp(force=True)
            if TAILDBG and j == n-1: st.setk(2); st.stamp(force=True)
            for aa in range(4):
                for b in range(4):
                    t = 4*aa+b
                    src = '0' if j == 0 else accr(t)
                    a.e(f'v_mfma_f32_16x16x32_bf16 {accr(t)}, {AF(j,aa)}, {bfr(j,b)}, {src}')
                    if j == n-1 and t >= 6:
                        a.e(f'ds_write_b128 v7, {accr(t-6)} offset:{1024*(t-6)}')
            if issued < n:
                bl(issued); issued += 1
        a.e('s_branch G2_RED')
    a.e('s_cmp_ge_u32 s3, 3')
    a.e('s_cbranch_scc1 G2_FIVE')
    g2body(6)
    a.label('G2_FIVE')
    g2body(5)
    a.label('G2_RED')
    if TAILDBG: st.setk(3); st.stamp(force=True)
    a.e('v_and_b32 v4, 15, v1')
    a.e('v_lshrrev_b32 v5, 4, v1')
    a.e('v_lshlrev_b32 v6, 10, v4')
    a.e('v_lshl_add_u32 v6, v5, 3, v6')
    a.e('s_lshl_b32 s8, s5, 16')
    a.e('s_lshl_b32 s9, s4, 7')
    a.e('s_add_u32 s8, s8, s9')
    a.e('s_lshr_b32 s9, s3, 1')
    a.e('s_lshl_b32 s9, s9, 5')
    a.e('s_add_u32 s8, s8, s9')
    a.e('s_and_b32 s13, s3, 1')
    a.e('s_lshl_b32 s14, s13, 15')
    a.e('s_add_u32 s60, s8, s14')
    a.e('s_add_u32 s61, s60, 16384')
    a.e('v_mul_u32_u24 v8, 144, v4')
    a.e('v_lshl_add_u32 v8, v5, 3, v8')
    a.e(f's_mul_i32 s14, s13, {32*144}')
    a.e('s_add_u32 s14, s14, s9')
    a.e(f's_add_u32 s14, s14, {STASH}')
    a.e('v_add_u32 v8, s14, v8')
    a.e('ds_read_b64 v[10:11], v8')
    a.e(f'ds_read_b64 v[12:13], v8 offset:{16*144}')
    a.e('s_nop 7')
    for t in range(10, 16):
        a.e(f'ds_write_b128 v7, {accr(t)} offset:{1024*t}')
    a.e('v_lshl_add_u32 v7, v2, 11, v3')
    a.e('v_add_u32 v9, 65536, v7')
    a.e('s_waitcnt lgkmcnt(0)')
    if TAILDBG: st.setk(4); st.stamp(force=True)
    a.e('s_barrier')
    if TAILDBG: st.setk(5); st.stamp(force=True)
    R = 64
    for b in range(2):
        for p in range(8):
            r = R + 32*b + 4*p
            a.e(f'ds_read_b128 v[{r}:{r+3}], v{7 if p < 4 else 9} offset:{(p%4)*16384 + 1024*b}')
    a.e('s_waitcnt lgkmcnt(0)')
    for b in range(2):
        r = R + 32*b
        for stp in (16, 8, 4):
            for k in range(stp): a.e(f'v_add_f32 v{r+k}, v{r+k}, v{r+k+stp}')
        a.e(f'v_cvt_pk_bf16_f32 v{r+4}, v{r}, v{r+1}')
        a.e(f'v_cvt_pk_bf16_f32 v{r+5}, v{r+2}, v{r+3}')
        for k in range(2):
            a.e(f'v_lshlrev_b32 v{r+2*k}, 16, v{r+4+k}')
            a.e(f'v_and_b32 v{r+2*k+1}, 0xffff0000, v{r+4+k}')
            a.e(f'v_lshlrev_b32 v{r+8+2*k}, 16, v{10+2*b+k}')
            a.e(f'v_and_b32 v{r+8+2*k+1}, 0xffff0000, v{10+2*b+k}')
        for j in range(4): a.e(f'v_add_f32 v{r+j}, v{r+j}, v{r+8+j}')
        a.e(f'v_cvt_pk_bf16_f32 v{r+4}, v{r}, v{r+1}')
        a.e(f'v_cvt_pk_bf16_f32 v{r+5}, v{r+2}, v{r+3}')
        a.e(f'buffer_store_dwordx2 v[{r+4}:{r+5}], v6, s[56:59], s{60+b} offen {OUTSC}')
    if STAMPS:
        a.e('s_waitcnt vmcnt(0)'); st.setk(12); st.stamp(force=True); st.dump(3, 2)
    a.label('KEND')
    a.e('s_endpgm')
    a.raw(kd(NAME, 256, accum=128))
    return a.text()

def AF(j, k):
    b = AFMAP[j] + 4*k
    return f'a[{b}:{b+3}]'
AFMAP = [0, 64, 16, 80, 32, 48]

def ln2(a, st):
    HV = 64
    S = 8; TM = 12; RB = 16
    a.e('v_lshlrev_b32 v48, 4, v3')
    a.e('v_lshl_add_u32 v49, v2, 9, v48')
    for i in range(4):
        a.e(f's_waitcnt vmcnt({12-4*i})')
        for c in range(4):
            for e in range(4):
                src = '0' if (i == 0 and c == 0) else f'v{S+e}'
                a.e(f'v_dot2_f32_bf16 v{S+e}, v{HV+16*i+4*c+e}, s80, {src}', dotc=True)
    st.stamp()
    def xpart(R, red):
        for e in range(4): a.e(f'v_mov_b32 v{TM+e}, v{R+e}')
        for e in range(4): a.e(f'v_permlane32_swap_b32 v{R+e}, v{TM+e}')
        for e in range(4): a.e(f'v_add_f32 v{R+e}, v{R+e}, v{TM+e}')
        a.e(f'v_add_u32 v50, {red}, v49')
        a.e(f'ds_write_b128 v50, v[{R}:{R+3}]')
    def xsum(R, red):
        a.e(f'v_add_u32 v51, {red}, v48')
        for w in range(8):
            a.e(f'ds_read_b128 v[{RB+4*w}:{RB+4*w+3}], v51 offset:{512*w}')
        a.e('s_waitcnt lgkmcnt(0)')
        for stp in (16, 8, 4):
            for k in range(stp): a.e(f'v_add_f32 v{RB+k}, v{RB+k}, v{RB+k+stp}')
        for e in range(4): a.e(f'v_mov_b32 v{R+e}, v{RB+e}')
    xpart(S, RED1)
    a.e('s_lshr_b32 s14, s3, 2')
    a.e('s_and_b32 s15, s4, 1')
    a.e('s_cmp_lg_u32 s14, s15')
    a.e('s_cbranch_scc1 NOHR')
    a.e('s_lshr_b32 s14, s4, 1')
    for i in range(4):
        if i < 3:
            a.e(f's_cmp_lg_u32 s14, {i}')
            a.e(f's_cbranch_scc1 HR{i+1}')
        for e in range(4):
            for c in range(4): a.e(f'v_mov_b32 v{RB+4*e+c}, v{HV+16*i+4*c+e}')
        if i < 3:
            a.e('s_branch HRS')
            a.label(f'HR{i+1}')
    a.label('HRS')
    a.e('v_and_b32 v50, 15, v3')
    a.e(f'v_mul_u32_u24 v50, {4*144}, v50')
    a.e('v_and_b32 v51, 7, v5')
    a.e('v_lshl_add_u32 v50, v51, 4, v50')
    a.e(f'v_add_u32 v50, {STASH}, v50')
    a.e('v_lshrrev_b32 v51, 4, v3')
    a.e('s_and_b32 s15, s7, 1')
    a.e('v_cmp_eq_u32 vcc, s15, v51')
    a.e('s_and_saveexec_b64 s[30:31], vcc')
    for e in range(4):
        a.e(f'ds_write_b128 v50, v[{RB+4*e}:{RB+4*e+3}] offset:{144*e}')
    a.e('s_mov_b64 exec, s[30:31]')
    a.label('NOHR')
    a.e('s_waitcnt lgkmcnt(0)')
    a.e('s_barrier')
    xsum(S, RED1)
    NM = 52; DL = 56
    for e in range(4): a.e(f'v_mul_f32 v{S+e}, {fh(-1.0/512)}, v{S+e}')
    for e in range(0, 4, 2): a.e(f'v_cvt_pk_bf16_f32 v{TM+e}, v{S+e}, v{S+e+1}')
    for e in range(0, 4, 2):
        a.e(f'v_lshlrev_b32 v{NM+e}, 16, v{TM+e}')
        a.e(f'v_and_b32 v{NM+e+1}, 0xffff0000, v{TM+e}')
    for e in range(4): a.e(f'v_sub_f32 v{DL+e}, v{NM+e}, v{S+e}')
    Q2 = 8; DT = 16; OUT = 32
    a.e(f'v_mul_u32_u24 v50, {XB}, v3')
    a.e('v_lshl_add_u32 v50, v5, 4, v50')
    for k in range(8): a.e(f'v_mov_b32 v{Q2+k}, 0')
    for i in range(4):
        for e2 in range(2):
            idx = [(c, e) for e in (2*e2, 2*e2+1) for c in range(4)]
            for k, (c, e) in enumerate(idx):
                r = HV+16*i+4*c+e
                a.e(f'v_dot2_f32_bf16 v{DT+2*k}, v{r}, s81, v{NM+e}')
                a.e(f'v_dot2_f32_bf16 v{DT+2*k+1}, v{r}, s82, v{NM+e}')
            for k, (c, e) in enumerate(idx):
                r = HV+16*i+4*c+e
                a.e(f'v_pk_fma_f32 v[{Q2+2*e}:{Q2+2*e+1}], v[{DT+2*k}:{DT+2*k+1}], v[{DT+2*k}:{DT+2*k+1}], v[{Q2+2*e}:{Q2+2*e+1}]')
                if EXACT: a.e(f'v_cvt_pk_bf16_f32 v{r}, v{DT+2*k}, v{DT+2*k+1}')
                else: a.e(f'v_cvt_pk_bf16_f32 v{OUT+8*(e2^(i&1)^(i&1))+4*(e&1)+c + (16 if False else 0)}, v{DT+2*k}, v{DT+2*k+1}')
            if not EXACT:
                for e in (2*e2, 2*e2+1):
                    o = OUT + 8*e2 + 4*(e&1)
                    a.e(f'ds_write_b128 v50, v[{o}:{o+3}] offset:{e*XA + 256*i}')
    Q = 60
    for e in range(4): a.e(f'v_add_f32 v{Q+e}, v{Q2+2*e}, v{Q2+2*e+1}')
    xpart(Q, RED2)
    a.e('s_waitcnt lgkmcnt(0)')
    a.e('s_barrier')
    global qfin
    def qfin():
        Q = 8; DL = 24
        a.e(f'ds_read_b128 v[8:11], v23')
        a.e(f'ds_read_b128 v[12:15], v23 offset:512')
        a.e(f'ds_read_b128 v[16:19], v23 offset:1024')
        a.e('s_waitcnt lgkmcnt(0)')
        for w in range(3, 9, 2):
            for e in range(4): a.e(f'v_add_f32 v{12+e}, v{12+e}, v{16+e}')
            for e in range(4): a.e(f'v_add_f32 v{8+e}, v{8+e}, v{12+e}')
            if w < 8:
                a.e(f'ds_read_b128 v[12:15], v23 offset:{512*w}')
                if w + 1 < 8: a.e(f'ds_read_b128 v[16:19], v23 offset:{512*(w+1)}')
                else:
                    for e in range(4): a.e(f'v_mov_b32 v{16+e}, 0')
                a.e('s_waitcnt lgkmcnt(0)')
        for e in range(4): a.e(f'v_add_f32 v{8+e}, v{8+e}, v{12+e}')
        for e in range(4): a.e(f'v_mul_f32 v{DL+e}, v{DL+e}, v{DL+e}')
        a.e(f's_mov_b32 s15, {fh(1.0/512)}')
        for e in range(4): a.e(f'v_fma_f32 v{Q+e}, v{Q+e}, s15, -v{DL+e}')
        for e in range(4): a.e(f'v_max_f32 v{Q+e}, 0, v{Q+e}')
        for e in range(4): a.e(f'v_cvt_pk_bf16_f32 v{Q+e}, v{Q+e}, v{Q+e}')
        for e in range(4): a.e(f'v_and_b32 v{Q+e}, 0xffff0000, v{Q+e}')
        for e in range(4): a.e(f'v_add_f32 v{Q+e}, {fh(1e-5)}, v{Q+e}')
        for e in range(4): a.e(f'v_cvt_pk_bf16_f32 v{Q+e}, v{Q+e}, v{Q+e}')
        for e in range(4): a.e(f'v_and_b32 v{Q+e}, 0xffff0000, v{Q+e}')
        for e in range(4): a.e(f'v_sqrt_f32 v{Q+e}, v{Q+e}')
        for e in range(4): a.e(f'v_cvt_pk_bf16_f32 v{Q+e}, v{Q+e}, v{Q+e}')
        for e in range(4): a.e(f'v_and_b32 v{Q+e}, 0xffff0000, v{Q+e}')
        for e in range(4): a.e(f'v_rcp_f32 v{Q+e}, v{Q+e}')
        a.e(f'v_add_u32 v22, {RSL-RED2}, v23')
        a.e(f'ds_write_b128 v22, v[{Q}:{Q+3}]')
        a.e('s_waitcnt lgkmcnt(0)')
        for lam in range(8): a.e(f'ds_read_b32 v{8+2*lam}, v31 offset:{64*lam}')
        a.e('s_waitcnt lgkmcnt(0)')
    assert not EXACT
    a.e(f'v_add_u32 v23, {RED2}, v48')
    for e in range(4): a.e(f'v_mov_b32 v{24+e}, v{DL+e}')
    a.e('v_and_b32 v3, 15, v1')
    a.e('v_lshrrev_b32 v4, 4, v1')
    a.e('v_and_b32 v5, 3, v3')
    a.e(f'v_mul_u32_u24 v5, {XA}, v5')
    a.e('v_lshrrev_b32 v6, 2, v3')
    a.e(f'v_mul_u32_u24 v6, {XB}, v6')
    a.e('v_add_u32 v5, v5, v6')
    a.e('v_lshl_add_u32 v28, v4, 4, v5')
    a.e(f'v_add_u32 v29, {4*4*XB}, v28')
    a.e(f'v_mul_u32_u24 v30, {172*256}, v4')
    a.e('v_lshl_add_u32 v30, v3, 4, v30')
    a.e('v_lshlrev_b32 v31, 2, v3')
    a.e(f'v_add_u32 v31, {RSL}, v31')
    a.e('v_lshlrev_b32 v7, 4, v1')
    a.e('s_waitcnt lgkmcnt(0)')
    st.stamp()
    if EXACT: a.e('s_barrier')

def gemm1(a, nt, nk):
    st = GST
    XF = 32; ACC = 64
    def rdgrp(ks, g):
        for k in range(4):
            r = XF + 16*g + 4*k
            a.e(f'ds_read_b128 v[{r}:{r+3}], v{28+g} offset:{k*4*XB + 64*ks}')
    def mfgrp(ks, g):
        for k in range(4):
            lam = 4*g + k
            for t in range(nt):
                acc = ACC + 32*t + 4*lam
                src = '0' if ks == 0 else f'v[{acc}:{acc+3}]'
                a.e(f'v_mfma_f32_16x16x32_bf16 v[{acc}:{acc+3}], a[{64*t+4*ks}:{64*t+4*ks+3}], v[{XF+16*g+4*k}:{XF+16*g+4*k+3}], {src}')
    def wd(j):
        for k in range(4):
            a.e(f'buffer_load_dwordx4 {AF(j,k)}, v7, s[48:51], s{60+k} offen offset:0 {SC}')
        for k in range(4): a.e(f's_add_u32 s{60+k}, s{60+k}, 8192')
    free_after = [(AFMAP[j]//4 + 3) if AFMAP[j] < 64 else ((AFMAP[j]-64)//4 + 3 if nt == 2 else -1) for j in range(nk)]
    sched = []; cur = -1
    for j in range(nk):
        cur = max(cur, free_after[j]); sched.append(cur)
    rdgrp(0, 0)
    for ks in range(16):
        rdgrp(ks, 1)
        a.e('s_waitcnt lgkmcnt(4)')
        mfgrp(ks, 0)
        if ks < 15:
            rdgrp(ks+1, 0)
            a.e('s_waitcnt lgkmcnt(4)')
        else:
            a.e('s_waitcnt lgkmcnt(0)')
        mfgrp(ks, 1)
        for j in range(nk):
            if sched[j] == ks and ks < 15: wd(j)
        if ks == 1: qfin()
    if G1DBG: kk0 = st.k; st.setk(1); st.stamp(force=True); st.setk(kk0)
    for j in range(nk):
        if sched[j] >= 15: wd(j)
    if G1DBG: kk0 = st.k; st.setk(2); st.stamp(force=True); st.setk(kk0)
    for t in range(nt):
        ts = 's10' if t == 0 else 's11'
        a.e('s_mul_i32 s14, s6, 1376')
        a.e(f's_add_u32 s14, s14, {ts}')
        a.e('s_lshl_b32 s14, s14, 8')
        for half in range(2):
            ob = 24 + 0
            OUTR = 32 + 4*((2*t+half) % 4)
            for l4 in range(4):
                lam = 4*half + l4
                acc = ACC + 32*t + 4*lam
                b = 48 + 8*(lam % 2)
                for k in (0, 2):
                    a.e(f'v_pk_mul_f32 v[{acc+k}:{acc+k+1}], v[{acc+k}:{acc+k+1}], v[{8+2*lam}:{9+2*lam}] op_sel:[0,0] op_sel_hi:[1,0]')
                a.e(f'v_cvt_pk_bf16_f32 v{b}, v{acc}, v{acc+2}')
                a.e(f'v_cvt_pk_bf16_f32 v{b+1}, v{acc+1}, v{acc+3}')
                a.e(f'v_pk_max_i16 v{b}, v{b}, 0')
                a.e(f'v_lshlrev_b32 v{b+4}, 16, v{b+1}')
                a.e(f'v_and_b32 v{b+5}, 0xffff0000, v{b+1}')
                a.e(f'v_lshlrev_b32 v{b+2}, 16, v{b}')
                a.e(f'v_and_b32 v{b+3}, 0xffff0000, v{b}')
                a.e(f'v_mul_f32 v{b+2}, v{b+2}, v{b+4}')
                a.e(f'v_mul_f32 v{b+3}, v{b+3}, v{b+5}')
                a.e(f'v_cvt_pk_bf16_f32 v{OUTR+l4}, v{b+2}, v{b+3}')
            a.e(f'v_permlane16_swap_b32 v{OUTR}, v{OUTR+1}')
            a.e(f'v_permlane16_swap_b32 v{OUTR+2}, v{OUTR+3}')
            a.e(f'v_permlane32_swap_b32 v{OUTR}, v{OUTR+2}')
            a.e(f'v_permlane32_swap_b32 v{OUTR+1}, v{OUTR+3}')
            lab = f'HS_{nt}{nk}{t}{half}'
            if not LOCAL:
                a.e(f'buffer_store_dwordx4 v[{OUTR}:{OUTR+3}], v30, s[56:59], s14 offen {SC}')
                if half == 0: a.e(f's_add_u32 s14, s14, {4*172*256}')
                continue
            a.e('s_cmp_eq_u32 s26, 1')
            a.e(f's_cbranch_scc1 {lab}a')
            a.e(f'buffer_store_dwordx4 v[{OUTR}:{OUTR+3}], v30, s[56:59], s14 offen {SC}')
            a.e(f's_branch {lab}b')
            a.label(f'{lab}a')
            a.e('s_nop 1')
            a.e(f'buffer_store_dwordx4 v[{OUTR}:{OUTR+3}], v30, s[56:59], s14 offen')
            a.label(f'{lab}b')
            if half == 0: a.e(f's_add_u32 s14, s14, {4*172*256}')

def build():
    hdr = open('sequential_preLN__ssm_conv_s4d__glu_gated_reglu__prompt.s.ref').read().split('\n')
    cm = [l for l in hdr if l.startswith(';') and '@launch' not in l]
    L = [f'; @launch grid=({GRID},1,1) block=(512,1,1) lds={LDS}']
    return '\n'.join(cm + L) + '\n.amdgcn_target "amdgcn-amd-amdhsa--gfx950"\n.text\n' + gen()
if __name__ == '__main__':
    out = sys.argv[1] if len(sys.argv) > 1 else 'fused12.s'
    open(out, 'w').write(build())
```

```python
import sys
from gen_common import *
LOG2E = 1.4426950408889634
def _split():
    m, e = math.frexp(LOG2E)
    hi = math.floor(m * 65536 + 0.5) / 65536 * 2**e
    return hi, (LOG2E - hi) * math.log(2.0)
C_HI, C_LO2 = _split()
FPL = int(os.environ.get('FPL', '1'))
MAPX = int(os.environ.get('MAPX', '1'))
P2DBG = os.environ.get('P2DBG', '') != ''
LOCAL = os.environ.get('LOCAL', '') != ''
OUTSC = os.environ.get('OUTSC', '')
G1DBG = os.environ.get('G1DBG', '') != ''
TAILDBG = os.environ.get('TAILDBG', '') != ''
JOBDBG = os.environ.get('JOBDBG', '') != ''
SLEEP = int(os.environ.get('SLEEP', '4'))
POLLSC = os.environ.get('POLLSC', 'sc1')
EXACT = os.environ.get('EXACT', '') != ''

NAME = 'sequential_preLN__ssm_conv_s4d__glu_gated_reglu__prompt_kernel'
GRID = 256
KG = 96*544
TBL = 2*KG
RL = TBL + 4096
KSL = RL + 2*4224
STG = 117248
LNT = STG + 2*17408
CH = 40960; KCS = 4160; UB = 33280
XA = 1088; XB = 4384; XSZ = 32*XB
RED1 = XSZ; RED2 = XSZ + 4096; RSL = XSZ + 8192
STASH = XSZ + 8192 + 512
LDS = 161536
SC = 'sc1'
X2S = 8448; H2S = 8448; WGS = 16640; H2N = 0x280000
FL = 0x830000
LOCW = KSL + 16
NJ_GU = 172; NJ_WD = 192; NJ = NJ_GU + NJ_WD

def gen():
    a = Asm()
    a.raw(head(NAME))
    st = Stamper(a, 0, base=83); st.stamp()
    global GST
    GST = st
    load_kernargs(a)
    a.e(f's_cmp_ge_u32 s2, {GRID}')
    a.e('s_cbranch_scc1 KEND')
    a.e('v_and_b32 v1, 63, v0')
    a.e('v_lshrrev_b32 v2, 6, v0')
    a.e('s_nop 0')
    a.e('v_readfirstlane_b32 s3, v2')
    a.e('s_waitcnt lgkmcnt(0)')
    srd(a, 72, 40, 41, 256)
    a.e('s_lshl_b32 s76, s2, 3')
    a.e('s_add_u32 s76, s76, s3')
    a.e('s_cmp_lg_u32 s76, 5')
    a.e('s_cbranch_scc1 NONONCE')
    a.e('s_memrealtime s[76:77]')
    a.e('s_waitcnt lgkmcnt(0)')
    a.e('s_lshl_b32 s76, s76, 6')
    a.e('s_or_b32 s76, s76, 0x40000000')
    a.e('v_mov_b32 v5, s76')
    a.e('v_mov_b32 v6, 0')
    a.e('s_mov_b64 exec, 1')
    a.e('buffer_store_dword v5, v6, s[72:75], 0 offen sc0 sc1')
    a.e('s_mov_b64 exec, -1')
    a.label('NONONCE')
    srd(a, 64, 16, 17, 0x200000)
    a.e('s_lshl_b32 s76, s2, 13')
    a.e('s_lshl_b32 s77, s3, 10')
    a.e('s_add_u32 s76, s76, s77')
    a.e('v_lshlrev_b32 v20, 4, v1')
    a.e('buffer_load_dwordx4 v[24:27], v20, s[64:67], s76 offen')
    a.e('v_lshrrev_b32 v21, 4, v0')
    a.e('v_lshlrev_b32 v21, 10, v21')
    a.e('v_and_b32 v22, 15, v0')
    a.e('v_lshl_add_u32 v21, v22, 4, v21')
    a.e('s_lshr_b32 s76, s2, 2')
    a.e('s_lshl_b32 s76, s76, 15')
    a.e('s_and_b32 s77, s2, 3')
    a.e('s_lshl_b32 s77, s77, 8')
    a.e('s_add_u32 s76, s76, s77')
    a.e('buffer_load_dwordx4 v[108:111], v21, s[64:67], s76 offen')
    srd(a, 44, 18, 19, 131072); srd(a, 48, 20, 21, 131072); srd(a, 52, 22, 23, 131072); srd(a, 56, 24, 25, 131072); srd(a, 60, 26, 27, 1024)
    a.e('s_lshr_b32 s4, s3, 2')
    a.e('s_lshl_b32 s5, s2, 1')
    a.e('s_add_u32 s5, s5, s4')
    a.e('s_lshl_b32 s76, s5, 8')
    a.e('s_lshl_b32 s77, s5, 1')
    a.e('v_and_b32 v3, 127, v0')
    a.e('v_lshlrev_b32 v5, 1, v3')
    a.e('v_lshlrev_b32 v6, 2, v1')
    a.e('v_mov_b32 v7, s77')
    a.e('buffer_load_ushort v10, v5, s[44:47], s76 offen')
    a.e('buffer_load_ushort v11, v5, s[48:51], s76 offen')
    a.e('buffer_load_ushort v12, v5, s[52:55], s76 offen')
    a.e('buffer_load_ushort v13, v5, s[56:59], s76 offen')
    a.e('buffer_load_dword v14, v6, s[52:55], s76 offen')
    a.e('buffer_load_dword v15, v6, s[56:59], s76 offen')
    a.e('buffer_load_ushort v16, v7, s[60:63], 0 offen')
    a.e('s_mov_b32 s80, 0x3f803f80')
    a.e('s_mov_b32 s81, 0x00003f80')
    a.e('s_mov_b32 s82, 0x3f800000')
    G = 32; O = 64
    STG2 = STG + 43*272
    a.e('s_cmp_ge_u32 s3, 6')
    a.e('s_cbranch_scc1 JL_WD')
    a.e('s_cmp_ge_u32 s3, 3')
    a.e('s_cselect_b32 s70, 1, 0')
    a.e('s_cselect_b32 s44, s34, s32')
    a.e('s_cselect_b32 s45, s35, s33')
    a.e('s_and_b32 s45, s45, 0xffff')
    a.e(f's_mov_b32 s46, {512*2752}')
    a.e('s_mov_b32 s47, 0x00020000')
    a.e('s_mul_i32 s71, s70, 3')
    a.e('s_sub_u32 s71, s3, s71')
    a.e('s_mul_i32 s76, s71, 14')
    a.e('s_min_u32 s77, s71, 1')
    a.e('s_add_u32 s76, s76, s77')
    a.e('s_add_u32 s77, s76, 13')
    a.e('s_cmp_eq_u32 s71, 0')
    a.e('s_cselect_b32 s77, 14, s77')
    a.e('v_add_u32 v17, s76, v1')
    a.e('v_min_u32 v17, s77, v17')
    a.e('s_and_b32 s76, s2, 3')
    a.e('s_mul_i32 s76, s76, 43')
    a.e('v_add_u32 v18, s76, v17')
    a.e('s_lshr_b32 s77, s2, 2')
    a.e('v_lshlrev_b32 v23, 4, v18')
    a.e(f's_mul_i32 s76, s77, {8*2752}')
    for j in range(8):
        a.e(f'buffer_load_dwordx4 v[{G+4*j}:{G+4*j+3}], v23, s[44:47], s76 offen')
        if j < 7: a.e('s_add_u32 s76, s76, 2752')
    a.e(f'v_mul_u32_u24 v19, {WGS}, v18')
    a.e('s_lshl_b32 s77, s77, 8')
    a.e('v_add_u32 v19, s77, v19')
    a.e('v_mul_u32_u24 v18, 272, v17')
    a.e('s_lshl_b32 s77, s70, 4')
    a.e(f's_add_u32 s77, s77, {STG}')
    a.e('v_add_u32 v18, s77, v18')
    a.e('s_mov_b32 s70, 32')
    a.e('s_branch JL_DONE')
    a.label('JL_WD')
    srd(a, 44, 36, 37, 1376*1024)
    a.e('s_sub_u32 s71, s3, 6')
    a.e('s_mul_i32 s76, s71, 22')
    a.e('s_add_u32 s77, s76, 20')
    a.e('s_cmp_eq_u32 s71, 0')
    a.e('s_cselect_b32 s77, 21, s77')
    a.e('v_add_u32 v17, s76, v1')
    a.e('v_min_u32 v17, s77, v17')
    a.e('s_mul_i32 s76, s2, 43')
    a.e('v_add_u32 v18, s76, v17')
    a.e('v_lshrrev_b32 v19, 6, v18')
    a.e('v_and_b32 v18, 63, v18')
    a.e('v_lshlrev_b32 v23, 13, v19')
    a.e('v_lshl_add_u32 v23, v18, 4, v23')
    a.e('s_movk_i32 s76, 0x1000')
    for j in range(8):
        so = 's76' if j >= 4 else '0'
        a.e(f'buffer_load_dwordx4 v[{G+4*j}:{G+4*j+3}], v23, s[44:47], {so} offen offset:{(j%4)*1024}')
    a.e('v_lshlrev_b32 v19, 8, v19')
    a.e('v_lshrrev_b32 v23, 1, v18')
    a.e('v_mul_u32_u24 v23, 44032, v23')
    a.e('v_add_u32 v19, v19, v23')
    a.e('v_and_b32 v18, 1, v18')
    a.e('v_lshl_add_u32 v19, v18, 7, v19')
    a.e('v_mul_u32_u24 v18, 144, v17')
    a.e(f'v_add_u32 v18, {STG2}, v18')
    a.e('s_mov_b32 s70, 16')
    a.label('JL_DONE')
    a.e('s_mov_b32 s78, 0x05040100')
    a.e('s_mov_b32 s79, 0x07060302')
    a.e('s_waitcnt vmcnt(15)')
    a.e('v_and_b32 v21, 15, v0')
    a.e(f'v_mul_u32_u24 v21, {4*144}, v21')
    a.e('v_lshrrev_b32 v22, 4, v0')
    a.e('v_lshl_add_u32 v21, v22, 2, v21')
    a.e(f'v_add_u32 v21, {LNT}, v21')
    for c in range(4): a.e(f'ds_write_b32 v21, v{108+c} offset:{144*c}')
    S = 28; TM = 29; Q = 30
    for c in range(4):
        src = '0' if c == 0 else f'v{S}'
        a.e(f'v_dot2_f32_bf16 v{S}, v{24+c}, s80, {src}', dotc=True)
    allreduce64(a, [S], [TM])
    a.e(f'v_mul_f32 v{S}, {fh(-1.0/512)}, v{S}')
    DD = 100
    for c in range(4):
        a.e(f'v_dot2_f32_bf16 v{DD+2*c}, v{24+c}, s81, v{S}')
        a.e(f'v_dot2_f32_bf16 v{DD+2*c+1}, v{24+c}, s82, v{S}')
    a.e(f'v_mul_f32 v{Q}, v{DD}, v{DD}')
    for k in range(1, 8): a.e(f'v_fmac_f32 v{Q}, v{DD+k}, v{DD+k}')
    allreduce64(a, [Q], [TM])
    a.e(f'v_mul_f32 v{Q}, {fh(1.0/512)}, v{Q}')
    a.e(f'v_cvt_pk_bf16_f32 v{S}, v{S}, v{Q}')
    a.e(f'v_and_b32 v{Q}, 0xffff0000, v{S}')
    a.e(f'v_add_f32 v{Q}, {fh(1e-5)}, v{Q}')
    a.e(f'v_cvt_pk_bf16_f32 v{Q}, v{Q}, v{Q}')
    a.e(f'v_and_b32 v{Q}, 0xffff0000, v{Q}')
    a.e(f'v_sqrt_f32 v{Q}, v{Q}')
    a.e(f'v_cvt_pk_bf16_f32 v{Q}, v{Q}, v{Q}')
    a.e(f'v_and_b32 v{Q}, 0xffff0000, v{Q}')
    a.e(f'v_and_b32 v{S}, 0xffff, v{S}')
    a.e(f'v_or_b32 v{S}, v{S}, v{Q}')
    a.e('v_lshlrev_b32 v22, 2, v2')
    a.e(f'v_add_u32 v22, {LNT+9216}, v22')
    a.e(f'ds_write_b32 v22, v{S}')
    a.e('v_lshrrev_b32 v22, 3, v0')
    a.e(f'v_mul_u32_u24 v21, 144, v22')
    a.e('v_and_b32 v31, 7, v0')
    a.e('v_lshl_add_u32 v21, v31, 4, v21')
    a.e(f'v_add_u32 v21, {LNT}, v21')
    a.e(f'v_mul_u32_u24 v22, {X2S}, v22')
    a.e('v_lshl_add_u32 v22, v31, 4, v22')
    a.e(f'v_mov_b32 v31, {LNT+9216}')
    srd_ws(a, 64, X2, 256*X2S); srd_ws(a, 60, ST, 8192)
    a.e('s_waitcnt vmcnt(0)')
    a.e('s_cmp_ge_u32 s3, 6')
    a.e('s_cbranch_scc1 JP_WD')
    for fi in range(8):
        o = O + 4*fi
        for kk in range(4):
            sel = 's79' if fi & 1 else 's78'
            a.e(f'v_perm_b32 v{o+kk}, v{G+4*(2*kk+1)+(fi>>1)}, v{G+4*(2*kk)+(fi>>1)}, {sel}')
        a.e(f'ds_write_b128 v18, v[{o}:{o+3}] offset:{32*fi}')
    a.e('v_and_b32 v18, 0xffffffe0, v18') if False else None
    a.e('s_cmp_ge_u32 s3, 3')
    a.e('s_cbranch_scc1 JP_DONE')
    a.e('ds_write_b32 v18, v19 offset:256')
    a.e('s_branch JP_DONE')
    a.label('JP_WD')
    for fi in range(8):
        o = O + 4*fi
        for kk in range(4):
            sel = 's79' if fi & 1 else 's78'
            a.e(f'v_perm_b32 v{o+kk}, v{G+4*(2*kk+1)+(fi>>1)}, v{G+4*(2*kk)+(fi>>1)}, {sel}')
        a.e(f'ds_write_b128 v18, v[{o}:{o+3}] offset:{16*fi}')
    a.e('ds_write_b32 v18, v19 offset:128')
    a.label('JP_DONE')
    a.e('v_lshrrev_b32 v17, 4, v0')
    a.e('v_mul_u32_u24 v17, 272, v17')
    a.e(f'v_add_u32 v17, {STG}, v17')
    a.e('v_and_b32 v18, 15, v0')
    a.e('v_lshlrev_b32 v18, 4, v18')
    a.e('v_add_u32 v19, v17, v18')
    a.e('v_lshrrev_b32 v23, 3, v0')
    a.e('v_min_u32 v23, 42, v23')
    a.e('v_mul_u32_u24 v23, 144, v23')
    a.e(f'v_add_u32 v23, {STG2}, v23')
    a.e('v_and_b32 v29, 7, v0')
    a.e('v_lshlrev_b32 v29, 4, v29')
    a.e('v_add_u32 v30, v23, v29')
    srd_ws(a, 52, WGU, 172*WGS); srd_ws(a, 56, WD, 32*43*1024)
    a.e('s_cmp_lg_u32 s3, 5')
    a.e('s_cbranch_scc1 NONL')
    a.e('v_mov_b32 v8, 0')
    a.e('buffer_load_dword v9, v8, s[72:75], 0 offen sc0 sc1')
    a.label('NONL')
    a.e('s_waitcnt lgkmcnt(0)')
    a.e('s_barrier')
    a.e('ds_read_b128 v[100:103], v19')
    a.e('ds_read_b32 v108, v17 offset:256')
    a.e(f'ds_read_b128 v[104:107], v19 offset:{32*272}')
    a.e(f'ds_read_b32 v109, v17 offset:{32*272+256}')
    a.e('ds_read_b128 v[24:27], v21')
    a.e('ds_read_b128 v[112:115], v31')
    a.e('ds_read_b128 v[116:119], v31 offset:16')
    a.e('s_and_b32 s76, s2, 3')
    a.e(f's_mul_i32 s76, s76, {64*X2S}')
    a.e('s_lshr_b32 s77, s2, 2')
    a.e('s_lshl_b32 s77, s77, 7')
    a.e('s_add_u32 s76, s76, s77')
    a.e('s_lshl_b32 s77, s2, 5')
    a.e('v_mov_b32 v31, 0')
    a.e('s_waitcnt lgkmcnt(2)')
    a.e(f'buffer_store_dwordx4 v[24:27], v22, s[64:67], s76 offen {SC}')
    a.e('s_cmp_lg_u32 s3, 0')
    a.e('s_cbranch_scc1 NOSTAT')
    a.e('s_waitcnt lgkmcnt(0)')
    a.e('s_mov_b64 exec, 1')
    a.e(f'buffer_store_dwordx4 v[112:115], v31, s[60:63], s77 offen {SC}')
    a.e(f'buffer_store_dwordx4 v[116:119], v31, s[60:63], s77 offen offset:16 {SC}')
    a.e('s_mov_b64 exec, -1')
    a.label('NOSTAT')
    if JOBDBG: st.setk(7); st.stamp(force=True)
    a.e('v_add_u32 v108, v108, v18')
    a.e('v_add_u32 v109, v109, v18')
    a.e('v_mov_b32 v47, 0x7f000000')
    a.e('v_cmp_gt_u32 vcc, 176, v0')
    a.e('v_cndmask_b32 v109, v47, v109, vcc')
    a.label('P2')
    st.setk(1); st.stamp()
    a.e('s_bfe_u32 s6, s3, 0x10001')
    a.e(f's_mov_b32 s64, {fh(512.0)}')
    a.e(f's_mov_b32 s65, {fh(128.0)}')
    a.e(f's_mov_b32 s66, {fh(4.0)}')
    a.e(f's_mov_b32 s67, {fh(64.0)}')
    a.e('s_cmp_eq_u32 s6, 0')
    a.e('s_cmov_b32 s64, 0')
    a.e(f's_cmov_b32 s65, {fh(32.0)}')
    a.e(f's_cmov_b32 s66, {fh(1.0)}')
    a.e(f's_cmov_b32 s67, {fh(16.0)}')
    a.e(f's_mov_b32 s8, {fh(C_HI)}')
    a.e(f's_mov_b32 s9, {fh(C_LO2)}')
    a.e(f's_mul_i32 s10, s4, {KG}')
    a.e(f's_mul_i32 s11, s6, {16*544}')
    a.e('s_add_u32 s11, s11, s10')
    a.e(f's_mul_i32 s12, s6, {32*544}')
    a.e('s_add_u32 s12, s12, s10')
    a.e('v_lshlrev_b32 v20, 2, v3')
    a.e('v_add_u32 v21, s11, v20')
    a.e('v_add_u32 v22, s12, v20')
    for r in (10, 11, 12, 13, 16): a.e(f'v_lshlrev_b32 v{r}, 16, v{r}')
    a.e('v_and_b32 v14, 0x7fff7fff, v14')
    a.e('v_and_b32 v15, 0x7fff7fff, v15')
    a.e('v_pk_max_u16 v14, v14, v15')
    a.e('v_lshrrev_b32 v15, 16, v14')
    a.e('v_and_b32 v14, 0xffff, v14')
    a.e('v_max_u32 v14, v14, v15')
    def expb(dst, x, t1, t2):
        a.e(f'v_mul_f32 v{t1}, s8, v{x}')
        a.e(f'v_mul_f32 v{t2}, s9, v{x}')
        a.e(f'v_exp_f32 v{t1}, v{t1}')
        a.e(f'v_fma_f32 v{t1}, v{t1}, v{t2}, v{t1}')
        a.e(f'v_cvt_pk_bf16_f32 v{t1}, v{t1}, v{t1}')
        a.e(f'v_and_b32 v{dst}, 0xffff0000, v{t1}')
    expb(16, 16, 24, 25); expb(10, 10, 26, 27)
    allreduce64(a, [14], [15], op='v_max_u32')
    for ins in ('v_lshrrev_b32 v14, 7, v14', 'v_max_u32 v14, 1, v14', 'v_min_u32 v14, 0xfd, v14', 'v_lshrrev_b32 v15, 23, v16',
                'v_max_u32 v15, 1, v15', 'v_min_u32 v15, 0xfd, v15', 'v_sub_u32 v24, 254, v14', 'v_lshlrev_b32 v24, 23, v24',
                'v_sub_u32 v25, 254, v15', 'v_lshlrev_b32 v25, 23, v25', 'v_lshlrev_b32 v14, 23, v14', 'v_lshlrev_b32 v15, 23, v15',
                'v_mul_f32 v14, v14, v15', 'v_add_f32 v14, v14, v14', 'v_mul_f32 v12, v12, v24', 'v_mul_f32 v13, v13, v24',
                'v_mul_f32 v25, v16, v25', 'v_mul_f32 v12, v12, v25', 'v_mul_f32 v13, v13, v25', 'v_mul_f32 v10, v10, v16',
                f'v_mul_f32 v10, {fh(-LOG2E)}, v10', 'v_mul_f32 v11, v11, v16', f'v_mul_f32 v11, {fh(1.0/(2*math.pi))}, v11'):
        a.e(ins)
    a.e('s_lshl_b32 s13, s4, 2')
    a.e(f's_add_u32 s13, s13, {KSL}')
    a.e('v_mov_b32 v7, s13')
    a.e('ds_write_b32 v7, v14')
    PW = 5
    def spin_head(tag):
        a.e('s_mov_b32 s15, 0x40000')
        a.label(f'WL_{tag}')
    def spin_tail(tag):
        a.e('s_sub_u32 s15, s15, 1')
        a.e('s_cmp_eq_u32 s15, 0')
        a.e(f's_cbranch_scc1 WD_{tag}')
        a.e('s_and_b64 vcc, vcc, exec')
        a.e(f's_cbranch_vccz WD_{tag}')
        if SLEEP: a.e(f's_sleep {SLEEP}')
        a.e(f's_branch WL_{tag}')
        a.label(f'WD_{tag}')
        a.e('s_mov_b64 exec, -1')
    def do_signal(val, tag):
        a.e(f's_cmp_lg_u32 s3, {PW}')
        a.e(f's_cbranch_scc1 SIG_{tag}')
        a.e('v_mov_b32 v6, 0')
        if val == 1:
            a.e('s_mov_b64 exec, 1')
            a.e('v_mov_b32 v5, v9')
            a.e('v_cmp_ne_u32 vcc, 0, v5')
            a.e('s_and_b64 vcc, vcc, exec')
            a.e('s_cbranch_vccnz WD_N')
            spin_head('N')
            a.e('buffer_load_dword v5, v6, s[72:75], 0 offen sc0 sc1')
            a.e('s_waitcnt vmcnt(0)')
            a.e('v_cmp_eq_u32 vcc, 0, v5')
            spin_tail('N')
            a.e('v_readfirstlane_b32 s25, v5')
            a.e('s_nop 3')
        a.e(f's_add_u32 s14, s25, {val}')
        a.e('s_add_u32 s14, s14, s27')
        a.e('v_mov_b32 v5, s14')
        a.e('s_mov_b64 exec, 1')
        a.e(f'buffer_store_dword v5, v6, s[76:79], s24 offen sc0 sc1')
        a.e('s_mov_b64 exec, -1')
        a.label(f'SIG_{tag}')
    def do_wait(val, nlanes, tag, off_sgpr=None):
        a.e(f's_cmp_lg_u32 s3, {PW}')
        a.e(f's_cbranch_scc1 WT_{tag}')
        a.e('v_lshlrev_b32 v5, 7, v1')
        a.e(f's_add_u32 s14, s25, {val}')
        grp = nlanes < 64
        if grp: a.e(f's_mov_b64 exec, {hx((1 << (4 if FPL == 4 else 16)) - 1)}')
        if FPL == 1 and not grp:
            a.e('v_add_u32 v20, 8192, v5'); a.e('v_add_u32 v21, 16384, v5'); a.e('v_add_u32 v22, 24576, v5')
        spin_head(tag)
        so = off_sgpr if off_sgpr else '0'
        if FPL == 4:
            a.e(f'buffer_load_dwordx4 v[16:19], v5, s[76:79], {so} offen {POLLSC}')
        elif grp:
            a.e(f'buffer_load_dword v16, v5, s[76:79], {so} offen {POLLSC}')
            a.e('s_waitcnt vmcnt(0)')
            for k in range(1, 4): a.e(f'v_mov_b32 v{16+k}, v16')
        else:
            for k, r in enumerate((5, 20, 21, 22)):
                a.e(f'buffer_load_dword v{16+k}, v{r}, s[76:79], 0 offen {POLLSC}')
        a.e('s_waitcnt vmcnt(0)')
        for k in range(4): a.e(f'v_subrev_u32 v{16+k}, s25, v{16+k}')
        for k in range(4): a.e(f'v_and_b32 v{52+k}, 0xffffffc7, v{16+k}')
        for k in range(4): a.e(f'v_subrev_u32 v{52+k}, {val}, v{52+k}')
        a.e('v_max3_u32 v52, v52, v53, v54')
        a.e('v_max_u32 v52, v52, v55')
        a.e(f'v_cmp_lt_u32 vcc, {4-val}, v52')
        spin_tail(tag)
        if tag == 'A':
            for k in range(4): a.e(f'v_and_b32 v{16+k}, 0x38, v{16+k}')
            for k in range(4): a.e(f'v_cmp_ne_u32 s[{64+2*k}:{65+2*k}], s27, v{16+k}')
            a.e('s_lshr_b32 s14, s18, 2')
            for k in range(1, 4):
                a.e(f's_cmp_eq_u32 s14, {k}')
                a.e(f's_cselect_b64 s[64:65], s[{64+2*k}:{65+2*k}], s[64:65]')
            a.e('s_and_b32 s14, s18, 3')
            a.e('s_lshl_b32 s14, s14, 4')
            a.e('s_lshr_b64 s[64:65], s[64:65], s14')
            a.e('s_and_b32 s64, s64, 0xffff')
            a.e('s_cmp_eq_u32 s64, 0')
            a.e('s_cselect_b32 s14, 1, 0')
            a.e('v_mov_b32 v5, s14')
            a.e(f'v_mov_b32 v6, {LOCW}')
            a.e('ds_write_b32 v6, v5')
            a.e('s_waitcnt lgkmcnt(0)')
        a.label(f'WT_{tag}')
    a.e('s_and_b32 s16, s2, 7')
    a.e('s_lshr_b32 s17, s2, 3')
    if MAPX == 2:
        a.e('s_lshr_b32 s18, s16, 1')
        a.e('s_lshl_b32 s18, s18, 2')
        a.e('s_and_b32 s19, s17, 3')
        a.e('s_add_u32 s18, s18, s19')
        a.e('s_and_b32 s19, s16, 1')
        a.e('s_lshl_b32 s19, s19, 3')
        a.e('s_lshr_b32 s20, s17, 2')
        a.e('s_add_u32 s19, s19, s20')
    elif MAPX:
        a.e('s_lshl_b32 s18, s16, 1')
        a.e('s_lshr_b32 s19, s17, 4')
        a.e('s_add_u32 s18, s18, s19')
        a.e('s_and_b32 s19, s17, 15')
    else:
        a.e('s_and_b32 s18, s16, 1')
        a.e('s_lshl_b32 s18, s18, 3')
        a.e('s_and_b32 s19, s17, 7')
        a.e('s_add_u32 s18, s18, s19')
        a.e('s_lshr_b32 s19, s16, 1')
        a.e('s_lshl_b32 s19, s19, 2')
        a.e('s_lshr_b32 s20, s17, 3')
        a.e('s_add_u32 s19, s19, s20')
    a.e('s_lshl_b32 s24, s18, 4')
    a.e('s_add_u32 s24, s24, s19')
    if FPL == 4:
        a.e('s_lshr_b32 s26, s24, 2')
        a.e('s_lshl_b32 s26, s26, 7')
        a.e('s_and_b32 s24, s24, 3')
        a.e('s_lshl_b32 s24, s24, 2')
        a.e('s_add_u32 s24, s24, s26')
    else:
        a.e('s_lshl_b32 s24, s24, 7')
    a.e('s_getreg_b32 s27, hwreg(HW_REG_XCC_ID, 0, 3)')
    a.e('s_lshl_b32 s27, s27, 3')
    FLS = 76
    srd_ws(a, FLS, FL, 32768)
    if P2DBG: st.setk(7); st.stamp(force=True)
    a.e('s_waitcnt vmcnt(0)')
    if P2DBG: st.setk(8); st.stamp(force=True)
    a.e('s_barrier')
    if P2DBG: st.setk(9); st.stamp(force=True)
    do_signal(1, 'A')
    if P2DBG: st.setk(10); st.stamp(force=True); st.setk(2)
    a.e(f'buffer_store_dwordx4 v[100:103], v108, s[52:55], 0 offen {SC}')
    a.e(f'buffer_store_dwordx4 v[104:107], v109, s[52:55], 0 offen {SC}')
    def cexp(dst, sp, conj, t):
        a.e(f'v_mul_f32 v{t}, s{sp}, v10')
        a.e(f'v_mul_f32 v{t+1}, s{sp}, v11')
        a.e(f'v_exp_f32 v{t}, v{t}')
        a.e(f'v_fract_f32 v{t+1}, v{t+1}')
        a.e(f'v_cos_f32 v{dst}, v{t+1}')
        a.e(f'v_sin_f32 v{dst+1}, v{t+1}')
        a.e(f'v_mul_f32 v{dst}, v{dst}, v{t}')
        if conj: a.e(f'v_mul_f32_e64 v{dst+1}, v{dst+1}, -v{t}')
        else: a.e(f'v_mul_f32 v{dst+1}, v{dst+1}, v{t}')
    def cmul(x, w, t):
        a.e(f'v_pk_mul_f32 v[{t}:{t+1}], v[{x}:{x+1}], v[{w}:{w+1}] op_sel:[0,0] op_sel_hi:[0,1]')
        a.e(f'v_pk_fma_f32 v[{x}:{x+1}], v[{x}:{x+1}], v[{w}:{w+1}], v[{t}:{t+1}] op_sel:[1,1,0] op_sel_hi:[1,0,1] neg_lo:[0,1,0]')
    X = 30; YA = 32; YB = 34; WX = 36; WY = 38; T0 = 40
    cexp(X, 64, False, T0); cexp(WX, 65, False, T0+2); cexp(WY, 66, True, T0+4); cexp(YB, 67, True, T0+6)
    cmul(X, 12, T0)
    a.e(f'v_mov_b32 v{YA}, 1.0')
    a.e(f'v_mov_b32 v{YA+1}, 0')
    P = 50
    for r in range(16):
        p = P + 3*(r % 2)
        a.e(f'v_cvt_pk_f16_f32 v{p}, v{X}, v{X+1}')
        a.e(f'v_cvt_pk_f16_f32 v{p+1}, v{YA}, v{YA+1}')
        a.e(f'v_cvt_pk_f16_f32 v{p+2}, v{YB}, v{YB+1}')
        a.e(f'ds_write_b32 v21, v{p} offset:{r*544}')
        a.e(f'ds_write_b32 v22, v{p+1} offset:{32*544 + r*544}')
        a.e(f'ds_write_b32 v22, v{p+2} offset:{32*544 + (16+r)*544}')
        if r < 15:
            cmul(X, WX, T0); cmul(YA, WY, T0+2); cmul(YB, WY, T0+4)
    a.e('s_and_b32 s7, s3, 1')
    a.e('v_and_b32 v3, 15, v1')
    a.e('v_lshrrev_b32 v4, 4, v1')
    a.e('v_mul_u32_u24 v7, 544, v3')
    a.e('v_lshl_add_u32 v7, v4, 4, v7')
    a.e(f's_mul_i32 s13, s7, {16*544}')
    a.e('s_add_u32 s13, s13, s12')
    a.e('v_add_u32 v8, s13, v7')
    a.e('v_add_u32 v9, s11, v7')
    a.e('s_lshl_b32 s13, s6, 10')
    a.e('s_lshl_b32 s14, s7, 5')
    a.e('s_add_u32 s13, s13, s14')
    a.e('s_lshl_b32 s14, s4, 11')
    a.e('s_add_u32 s13, s13, s14')
    a.e(f's_add_u32 s13, s13, {TBL}')
    a.e('v_lshlrev_b32 v20, 6, v3')
    a.e('v_lshl_add_u32 v20, v4, 3, v20')
    a.e('v_add_u32 v20, s13, v20')
    a.e('s_waitcnt lgkmcnt(0) vmcnt(0)')
    st.stamp()
    a.e('s_barrier')
    do_signal(2, 'W')
    a.e('s_and_b32 s13, s2, 15')
    a.e('s_lshl_b32 s13, s13, 2')
    FA = 64; FB = 96; AC = 60
    for ks in range(8):
        a.e(f'ds_read_b128 v[{FA+4*ks}:{FA+4*ks+3}], v8 offset:{32*544 + 64*ks}')
        a.e(f'ds_read_b128 v[{FB+4*ks}:{FB+4*ks+3}], v9 offset:{64*ks}')
    for ks in range(8):
        a.e(f's_waitcnt lgkmcnt({14-2*ks})')
        src = '0' if ks == 0 else f'v[{AC}:{AC+3}]'
        a.e(f'v_mfma_f32_16x16x32_f16 v[{AC}:{AC+3}], v[{FA+4*ks}:{FA+4*ks+3}], v[{FB+4*ks}:{FB+4*ks+3}], {src}')
    a.e('v_and_b32 v23, 255, v0')
    a.e('v_lshlrev_b32 v21, 3, v23')
    a.e('v_sub_u32 v21, 2047, v21')
    I = 30
    for i in range(8): a.e(f'v_subrev_u32 v{I+i}, {i}, v21')
    for i in range(8): a.e(f'v_cvt_f32_u32 v{I+i}, v{I+i}')
    for i in range(0, 8, 2): a.e(f'v_cvt_pk_bf16_f32 v{40+i//2}, v{I+i}, v{I+i+1}')
    for i in range(0, 8, 2):
        a.e(f'v_lshlrev_b32 v{I+i}, 16, v{40+i//2}')
        a.e(f'v_and_b32 v{I+i+1}, 0xffff0000, v{40+i//2}')
    for i in range(8): a.e(f'v_cvt_u32_f32 v{I+i}, v{I+i}')
    a.e('s_lshl_b32 s14, s4, 11')
    a.e(f's_add_u32 s14, s14, {TBL}')
    for i in range(8):
        a.e(f'v_lshrrev_b32 v{40+i}, 2, v{I+i}')
        a.e(f'v_add_u32 v{40+i}, 384, v{40+i}')
        a.e(f'v_min_u32 v{I+i}, v{I+i}, v{40+i}')
        a.e(f'v_lshl_add_u32 v{I+i}, v{I+i}, 1, s14')
    a.e(f'v_cvt_pk_f16_f32 v50, v{AC}, v{AC+1}')
    a.e(f'v_cvt_pk_f16_f32 v51, v{AC+2}, v{AC+3}')
    a.e('ds_write_b64 v20, v[50:51]')
    a.e('s_mul_i32 s20, s19, 11')
    a.e('s_mul_i32 s21, s19, 10')
    a.e('s_add_u32 s21, s21, 12')
    a.e('s_min_u32 s20, s20, s21')
    a.e('s_cmp_lt_u32 s19, 12')
    a.e('s_cselect_b32 s21, 3, 2')
    a.e('s_add_u32 s22, s20, s3')
    a.e('s_add_u32 s23, s22, 8')
    a.e('s_waitcnt lgkmcnt(0)')
    do_wait(1, 64, 'A')
    a.e('s_barrier')
    st.stamp()
    a.e(f'v_mov_b32 v5, {LOCW}')
    a.e('ds_read_b32 v5, v5')
    a.e('s_waitcnt lgkmcnt(0)')
    a.e('v_readfirstlane_b32 s26, v5')
    srd_ws(a, 44, X2, 256*X2S); srd_ws(a, 48, ST, 8192); srd(a, 60, 28, 29, 1024); srd_ws(a, 64, H2N, 256*H2S); srd_ws(a, 52, WGU, 172*WGS)
    a.e(f's_mul_i32 s68, s2, {H2S}')
    a.e('s_lshl_b32 s69, s2, 2')
    a.e(f's_mul_i32 s70, s2, {X2S}')
    XR = 8; UBF = 12; SR = 16
    a.e('v_lshlrev_b32 v28, 4, v0')
    a.e('v_mov_b32 v5, 0')
    a.e(f'buffer_load_dwordx4 v[{XR}:{XR+3}], v28, s[44:47], s70 offen {SC}')
    a.e(f'buffer_load_dwordx4 v[{SR}:{SR+3}], v28, s[48:51], 0 offen {SC}')
    a.e('buffer_load_dword v29, v5, s[60:63], s69 offen')
    a.e('v_lshlrev_b32 v7, 4, v1')
    def wloads(tile_s, abase):
        a.e(f's_mul_i32 s14, {tile_s}, {WGS}')
        for k4 in range(4):
            for k in range(4):
                r = abase + 4*(4*k4+k)
                a.e(f'buffer_load_dwordx4 a[{r}:{r+3}], v7, s[52:55], s14 offen offset:{k*1024} {SC}')
            if k4 < 3: a.e('s_add_u32 s14, s14, 4096')
    for i in range(8): a.e(f'ds_read_u16 v{40+i}, v{I+i}')
    a.e('s_mul_i32 s14, s4, 4224')
    a.e(f's_add_u32 s14, s14, {RL}')
    a.e('v_lshl_add_u32 v21, v23, 4, s14')
    for k in range(4): a.e(f'v_mov_b32 v{56+k}, 0')
    a.e('s_waitcnt lgkmcnt(0)')
    for k in range(4): a.e(f'v_lshl_or_b32 v{52+k}, v{41+2*k}, 16, v{40+2*k}')
    a.e('ds_write_b128 v21, v[52:55]')
    a.e('v_cmp_gt_u32 vcc, 8, v23')
    a.e('s_and_saveexec_b64 s[30:31], vcc')
    a.e('ds_write_b128 v21, v[56:59] offset:4096')
    a.e('s_mov_b64 exec, s[30:31]')
    a.e(f's_mul_i32 s14, s4, {CH}')
    a.e('v_lshl_add_u32 v22, v23, 4, s14')
    a.e('v_cmp_gt_u32 vcc, 160, v23')
    a.e('s_and_saveexec_b64 s[30:31], vcc')
    a.e(f'ds_write_b128 v22, v[56:59] offset:{UB}')
    a.e('s_mov_b64 exec, s[30:31]')
    a.e('s_waitcnt lgkmcnt(0)')
    a.e('s_barrier')
    a.e(f's_cmp_lg_u32 s3, {PW}')
    a.e('s_cbranch_scc1 NOAP')
    a.e('v_lshlrev_b32 v124, 7, v1')
    a.e('v_add_u32 v125, 8192, v124'); a.e('v_add_u32 v126, 16384, v124'); a.e('v_add_u32 v127, 24576, v124')
    for k in range(4):
        a.e(f'buffer_load_dword v{120+k}, v{124+k}, s[76:79], 0 offen {POLLSC}')
    a.label('NOAP')
    def copies(vr, roff, vw, woff):
        A = 32; B = 40; TA = 48; TB2 = 56
        a.e(f'ds_read_b128 v[{A}:{A+3}], v{vr} offset:{roff}')
        a.e(f'ds_read_b128 v[{A+4}:{A+7}], v{vr} offset:{roff+16}')
        a.e('s_waitcnt lgkmcnt(0)')
        for k in range(6): a.e(f'v_mov_b32 v{B+k}, v{A+k+1}')
        for k in range(6):
            a.e(f'v_alignbit_b32 v{TA+k}, v{A+k+1}, v{A+k}, 16')
            a.e(f'v_alignbit_b32 v{TB2+k}, v{A+k+2}, v{A+k+1}, 16')
        src = {0: A, 4: A+2, 2: B, 6: B+2, 1: TA, 5: TA+2, 3: TB2, 7: TB2+2}
        for s in (0, 4, 2, 6, 1, 5, 3, 7):
            a.e(f'ds_write_b128 v{vw}, v[{src[s]}:{src[s]+3}] offset:{woff + s*KCS}')
    copies(21, 0, 22, 0)
    a.e('v_cmp_gt_u32 vcc, 4, v23')
    a.e('s_and_saveexec_b64 s[30:31], vcc')
    a.e('s_cbranch_execz NOX')
    a.e('s_waitcnt lgkmcnt(0)')
    copies(21, 4096, 22, 4096)
    a.label('NOX')
    a.e('s_mov_b64 exec, s[30:31]')
    a.e('s_waitcnt vmcnt(0)')
    T = 64
    for l in range(4):
        a.e(f'v_lshlrev_b32 v{T+l}, 16, v{SR+l}')
        a.e(f'v_and_b32 v{T+4+l}, 0xffff0000, v{SR+l}')
    for l in range(4): a.e(f'v_rcp_f32 v{T+4+l}, v{T+4+l}')
    for l in range(4):
        a.e(f'v_dot2_f32_bf16 v{T+8+2*l}, v{XR+l}, s81, v{T+l}')
        a.e(f'v_dot2_f32_bf16 v{T+9+2*l}, v{XR+l}, s82, v{T+l}')
    for l in range(4): a.e(f'v_cvt_pk_bf16_f32 v{T+l}, v{T+8+2*l}, v{T+9+2*l}')
    for l in range(4):
        a.e(f'v_lshlrev_b32 v{T+8+2*l}, 16, v{T+l}')
        a.e(f'v_and_b32 v{T+9+2*l}, 0xffff0000, v{T+l}')
    for l in range(4):
        a.e(f'v_mul_f32 v{T+8+2*l}, v{T+8+2*l}, v{T+4+l}')
        a.e(f'v_mul_f32 v{T+9+2*l}, v{T+9+2*l}, v{T+4+l}')
    for l in range(4): a.e(f'v_cvt_pk_bf16_f32 v{UBF+l}, v{T+8+2*l}, v{T+9+2*l}')
    for l in range(4):
        a.e(f'v_lshlrev_b32 v{T+8+2*l}, 16, v{UBF+l}')
        a.e(f'v_and_b32 v{T+9+2*l}, 0xffff0000, v{UBF+l}')
    for c in range(2):
        for k in range(2):
            a.e(f'v_cvt_pk_f16_f32 v{T+2*c+k}, v{T+8+4*k+c}, v{T+10+4*k+c}')
    a.e('v_lshrrev_b32 v24, 3, v0')
    a.e('v_mul_u32_u24 v24, 80, v24')
    a.e('v_and_b32 v25, 7, v0')
    a.e('v_lshl_add_u32 v24, v25, 3, v24')
    a.e(f'v_add_u32 v25, {CH}, v24')
    a.e(f'ds_write_b64 v24, v[{T}:{T+1}] offset:{UB+32*80}')
    a.e(f'ds_write_b64 v25, v[{T+2}:{T+3}] offset:{UB+32*80}')
    a.e('v_lshlrev_b32 v27, 4, v1')
    a.e(f's_mul_i32 s60, s22, {WGS}')
    a.e(f's_mul_i32 s61, s23, {WGS}')
    a.e('s_cmp_ge_u32 s3, s21')
    a.e(f's_cselect_b32 s61, {hx(0x7f000000)}, s61')
    a.e('s_and_b32 s6, s3, 3')
    a.e('v_and_b32 v6, 31, v1')
    a.e('v_lshrrev_b32 v7, 5, v1')
    a.e('v_and_b32 v26, 7, v6')
    a.e('v_sub_u32 v26, 7, v26')
    a.e(f'v_mul_u32_u24 v26, {KCS}, v26')
    a.e('v_lshrrev_b32 v25, 3, v6')
    a.e('v_sub_u32 v25, 3, v25')
    a.e('v_add_u32 v25, v25, v7')
    a.e('v_lshl_add_u32 v26, v25, 4, v26')
    a.e('s_sub_u32 s7, 3, s6')
    a.e('s_lshl_b32 s13, s7, 6')
    a.e('s_add_u32 s13, s13, s14')
    a.e('v_add_u32 v26, s13, v26')
    a.e('v_mul_u32_u24 v30, 80, v6')
    a.e('v_lshl_add_u32 v30, v7, 4, v30')
    a.e('s_mul_i32 s13, s7, 80')
    a.e('s_add_u32 s13, s13, s14')
    a.e('v_add_u32 v30, s13, v30')
    a.e('v_mul_u32_u24 v31, 144, v6')
    a.e('v_lshl_add_u32 v31, v7, 4, v31')
    a.e('s_mul_i32 s13, s6, 9216')
    a.e('s_add_u32 s13, s13, s14')
    a.e('v_add_u32 v31, s13, v31')
    a.e('v_lshrrev_b32 v20, 3, v0')
    a.e('v_min_u32 v20, 42, v20')
    a.e('v_mul_u32_u24 v20, 144, v20')
    a.e(f'v_add_u32 v20, {STG2}, v20')
    a.e('v_and_b32 v21, 7, v0')
    a.e('v_lshlrev_b32 v21, 4, v21')
    a.e('v_add_u32 v22, v20, v21')
    a.e('ds_read_b128 v[32:35], v22')
    a.e('ds_read_b32 v36, v20 offset:128')
    srd_ws(a, 56, WD, 32*43*1024)
    a.e('v_mov_b32 v37, 0x7f000000')
    a.e('v_cmp_gt_u32 vcc, 344, v0')
    a.e('s_waitcnt lgkmcnt(0)')
    a.e('v_add_u32 v36, v36, v21')
    a.e('v_cndmask_b32 v36, v37, v36, vcc')
    a.e(f's_cmp_lg_u32 s3, {PW}')
    a.e('s_cbranch_scc1 WT_W')
    for k in range(4): a.e(f'v_subrev_u32 v{120+k}, s25, v{120+k}')
    for k in range(4): a.e(f'v_and_b32 v{120+k}, 0xffffffc7, v{120+k}')
    for k in range(4): a.e(f'v_subrev_u32 v{120+k}, 2, v{120+k}')
    a.e('v_max3_u32 v120, v120, v121, v122')
    a.e('v_max_u32 v120, v120, v123')
    a.e('v_cmp_lt_u32 vcc, 2, v120')
    a.e('s_nop 1')
    a.e('s_cbranch_vccz WT_W')
    do_wait(2, 64, 'W')
    a.e(f'buffer_store_dwordx4 v[32:35], v36, s[56:59], 0 offen {SC}')
    st.stamp()
    a.e('s_barrier')
    ACC0 = 96; ACC1 = 112; F = [32, 64]
    NU = 8
    def rd(i, k):
        base = F[i % 2] + 4*k
        dst = f'v[{base}:{base+3}]'
        h = k // 4; kk = k % 4
        if kk == 0:   a.e(f'ds_read_b128 {dst}, v26 offset:{32*(126-8*i+h)-192}')
        elif kk == 1: a.e(f'ds_read_b128 {dst}, v30 offset:{UB + (29-4*i)*80 + 32*h}')
        elif kk == 2: a.e(f'ds_read_b128 {dst}, v30 offset:{UB + (61-4*i)*80 + 32*h}')
        else:         a.e(f'ds_read_b128 {dst}, v26 offset:{32*(62-8*i+h)-192}')
    def fr(i, k):
        base = F[i % 2] + 4*k
        return f'v[{base}:{base+3}]'
    for k in range(8): rd(0, k)
    for i in range(NU):
        last = (i == NU-1)
        waits = [6, 7, 8, 8, 9, 8] if not last else [6, 5, 4, 2, 1, 0]
        mf = [(ACC0, 0, 1), (ACC1, 0, 2), (ACC1, 3, 1), (ACC0, 4, 5), (ACC1, 4, 6), (ACC1, 7, 5)]
        for j, (acc, ka, kb) in enumerate(mf):
            a.e(f's_waitcnt lgkmcnt({waits[j]})')
            first = (i == 0 and j < 2)
            src = '0' if first else f'v[{acc}:{acc+15}]'
            a.e(f'v_mfma_f32_32x32x16_f16 v[{acc}:{acc+15}], {fr(i,ka)}, {fr(i,kb)}, {src}')
            if not last and j < 4:
                rd(i+1, 2*j); rd(i+1, 2*j+1)
            if j in (1, 4):
                ks = 2*i + (0 if j == 1 else 1)
                r = 4*ks
                a.e(f'buffer_load_dwordx4 a[{r}:{r+3}], v27, s[52:55], s60 offen offset:{(ks%4)*1024} {SC}')
            if j == 5 and i % 2 == 1 and not last:
                a.e('s_add_u32 s60, s60, 4096')
    st.stamp()
    a.e('s_barrier')
    for cg, acc in ((0, ACC0), (1, ACC1)):
        for i4 in range(4):
            a.e(f'ds_write_b128 v31, v[{acc+4*i4}:{acc+4*i4+3}] offset:{cg*4608 + 32*i4}')
    a.e('v_lshrrev_b32 v6, 3, v0')
    a.e('v_mul_u32_u24 v6, 144, v6')
    a.e('v_and_b32 v7, 7, v0')
    a.e('v_lshl_add_u32 v6, v7, 4, v6')
    a.e(f'v_add_u32 v7, {CH}, v6')
    a.e(f'v_mov_b32 v20, {KSL}')
    a.e('v_lshlrev_b32 v22, 16, v29')
    a.e('v_and_b32 v23, 0xffff0000, v29')
    a.e('s_waitcnt lgkmcnt(0)')
    a.e('s_barrier')
    PR = 32
    a.e('ds_read_b64 v[24:25], v20')
    for c in range(2):
        for p in range(4):
            r = PR + 16*c + 4*p
            a.e(f'ds_read_b128 v[{r}:{r+3}], v{6+c} offset:{p*9216}')
    W = 64
    for l in range(4):
        a.e(f'v_lshlrev_b32 v{W+2*l}, 16, v{UBF+l}')
        a.e(f'v_and_b32 v{W+2*l+1}, 0xffff0000, v{UBF+l}')
    for l in range(4):
        a.e(f'v_mul_f32 v{W+2*l}, v{W+2*l}, v22')
        a.e(f'v_mul_f32 v{W+2*l+1}, v{W+2*l+1}, v23')
    for l in range(4): a.e(f'v_cvt_pk_bf16_f32 v{W+8+l}, v{W+2*l}, v{W+2*l+1}')
    for l in range(4):
        a.e(f'v_lshlrev_b32 v{W+2*l}, 16, v{W+8+l}')
        a.e(f'v_and_b32 v{W+2*l+1}, 0xffff0000, v{W+8+l}')
    a.e('s_waitcnt lgkmcnt(0)')
    for c in range(2):
        r = PR + 16*c
        for l in range(4):
            a.e(f'v_add_f32 v{r+l}, v{r+l}, v{r+4+l}')
            a.e(f'v_add_f32 v{r+8+l}, v{r+8+l}, v{r+12+l}')
        for l in range(4): a.e(f'v_add_f32 v{r+l}, v{r+l}, v{r+8+l}')
        for l in range(4): a.e(f'v_mul_f32 v{r+l}, v{r+l}, v{24+c}')
    for l in range(4): a.e(f'v_cvt_pk_bf16_f32 v{W+8+l}, v{PR+l}, v{PR+16+l}')
    for l in range(4):
        a.e(f'v_lshlrev_b32 v{PR+2*l}, 16, v{W+8+l}')
        a.e(f'v_and_b32 v{PR+2*l+1}, 0xffff0000, v{W+8+l}')
    for l in range(8): a.e(f'v_add_f32 v{W+l}, v{W+l}, v{PR+l}')
    for l in range(4): a.e(f'v_cvt_pk_bf16_f32 v{W+8+l}, v{W+2*l}, v{W+2*l+1}')
    for l in range(4):
        a.e(f'v_lshlrev_b32 v{W+2*l}, 16, v{W+8+l}')
        a.e(f'v_and_b32 v{W+2*l+1}, 0xffff0000, v{W+8+l}')
        a.e(f'v_lshlrev_b32 v{PR+2*l}, 16, v{XR+l}')
        a.e(f'v_and_b32 v{PR+2*l+1}, 0xffff0000, v{XR+l}')
    for l in range(8): a.e(f'v_add_f32 v{W+l}, v{W+l}, v{PR+l}')
    for l in range(4): a.e(f'v_cvt_pk_bf16_f32 v{W+8+l}, v{W+2*l}, v{W+2*l+1}')
    a.e(f'buffer_store_dwordx4 v[{W+8}:{W+11}], v28, s[64:67], s68 offen {SC}')
    a.e('s_mov_b32 s6, s18'); a.e('s_mov_b32 s7, s19'); a.e('s_mov_b32 s9, s21'); a.e('s_mov_b32 s10, s22'); a.e('s_mov_b32 s11, s23')
    srd_ws(a, 44, H2N, 256*H2S); srd_ws(a, 56, HF, 128*172*256); srd_ws(a, 48, WD, 32*43*1024)
    a.e('v_and_b32 v3, 31, v1')
    a.e('v_lshrrev_b32 v4, 5, v1')
    a.e('v_lshl_add_u32 v5, v2, 1, v4')
    a.e(f'v_mul_u32_u24 v8, {4*H2S}, v5')
    a.e('v_lshl_add_u32 v8, v3, 4, v8')
    a.e('s_lshl_b32 s12, s6, 9')
    a.e('v_add_u32 v8, s12, v8')
    a.e('v_mov_b32 v62, v5')
    a.e('s_and_b32 s13, s2, 15')
    a.e('s_lshl_b32 s13, s13, 2')
    a.e('s_waitcnt vmcnt(0)')
    st.stamp()
    if JOBDBG or P2DBG: st.off = True
    a.e('s_barrier')
    do_signal(3, 'B')
    a.e('s_cmp_ge_u32 s3, s21')
    a.e('s_cbranch_scc1 NOWB')
    a.e('v_lshlrev_b32 v7, 4, v1')
    wloads('s23', 64)
    a.label('NOWB')
    do_wait(3, 64, 'B')
    a.e('s_barrier')
    st.stamp()
    HV = 64
    for i in range(4):
        for c in range(4):
            a.e(f's_mov_b32 s13, {(64*i + c)*H2S}')
            r = HV + 16*i + 4*c
            a.e(f'buffer_load_dwordx4 v[{r}:{r+3}], v8, s[44:47], s13 offen {SC}')
    a.e('v_mov_b32 v5, v62')
    a.e('s_and_b32 s4, s7, 1')
    a.e('s_lshl_b32 s5, s6, 1')
    a.e('s_add_u32 s5, s5, s4')
    a.e('s_lshr_b32 s4, s7, 1')
    a.e(f's_mul_i32 s8, s4, {4*43*1024}')
    a.e('s_lshl_b32 s12, s3, 10')
    a.e('s_add_u32 s8, s8, s12')
    for k in range(4): a.e(f's_add_u32 s{60+k}, s8, {k*43*1024}')
    a.e(f's_mul_i32 s8, s5, {4*44032}')
    a.e('s_add_u32 s8, s8, s12')
    for k in range(4): a.e(f's_add_u32 s{64+k}, s8, {k*44032}')
    ln2(a, st)
    a.e('s_cmp_lt_u32 s3, s9')
    a.e('s_cbranch_scc1 G1_TWO')
    a.e('s_cmp_lt_u32 s3, 3')
    a.e('s_cbranch_scc1 G1_16')
    gemm1(a, 1, 5); a.e('s_branch G1_DONE')
    a.label('G1_16')
    gemm1(a, 1, 6); a.e('s_branch G1_DONE')
    a.label('G1_TWO')
    gemm1(a, 2, 6)
    a.label('G1_DONE')
    if G1DBG:
        kk0 = st.k; st.setk(3); st.stamp(force=True); st.setk(kk0)
        a.e('s_add_u32 s87, s83, s26')
    a.e(f's_lshl_b32 s12, s6, {9 if FPL == 4 else 11}')
    a.e('s_waitcnt vmcnt(0)')
    st.stamp()
    a.e('s_barrier')
    do_signal(4, 'C')
    srd_ws(a, 48, HF, 128*172*256); srd(a, 56, 38, 39, 0x200000)
    do_wait(4, 4, 'C', off_sgpr='s12')
    a.e('v_lshlrev_b32 v3, 4, v1')
    a.e('v_lshl_add_u32 v7, v2, 14, v3')
    a.e('s_barrier')
    st.stamp()
    def bfr(j, k):
        jj = j % 5
        return f'v[{48+16*jj+4*k}:{48+16*jj+4*k+3}]'
    def accr(t):
        return f'a[{96+4*t}:{96+4*t+3}]' if t < 8 else f'v[{16+4*(t-8)}:{16+4*(t-8)+3}]'
    def g2body(n):
        def bl(j):
            for k in range(4):
                a.e(f'buffer_load_dwordx4 {bfr(j,k)}, v3, s[48:51], s{64+k} offen {SC}')
            for k in range(4): a.e(f's_add_u32 s{64+k}, s{64+k}, 8192')
        for j in range(5): bl(j)
        issued = 5
        for j in range(n):
            a.e(f's_waitcnt vmcnt({4*(issued-j-1)})')
            if TAILDBG and j == 0: st.setk(1); st.stamp(force=True)
            if TAILDBG and j == n-1: st.setk(2); st.stamp(force=True)
            for aa in range(4):
                for b in range(4):
                    t = 4*aa+b
                    src = '0' if j == 0 else accr(t)
                    a.e(f'v_mfma_f32_16x16x32_bf16 {accr(t)}, {AF(j,aa)}, {bfr(j,b)}, {src}')
                    if j == n-1 and t >= 6:
                        a.e(f'ds_write_b128 v7, {accr(t-6)} offset:{1024*(t-6)}')
            if issued < n:
                bl(issued); issued += 1
        a.e('s_branch G2_RED')
    a.e('s_cmp_ge_u32 s3, 3')
    a.e('s_cbranch_scc1 G2_FIVE')
    g2body(6)
    a.label('G2_FIVE')
    g2body(5)
    a.label('G2_RED')
    if TAILDBG: st.setk(3); st.stamp(force=True)
    a.e('v_and_b32 v4, 15, v1')
    a.e('v_lshrrev_b32 v5, 4, v1')
    a.e('v_lshlrev_b32 v6, 10, v4')
    a.e('v_lshl_add_u32 v6, v5, 3, v6')
    a.e('s_lshl_b32 s8, s5, 16')
    a.e('s_lshl_b32 s9, s4, 7')
    a.e('s_add_u32 s8, s8, s9')
    a.e('s_lshr_b32 s9, s3, 1')
    a.e('s_lshl_b32 s9, s9, 5')
    a.e('s_add_u32 s8, s8, s9')
    a.e('s_and_b32 s13, s3, 1')
    a.e('s_lshl_b32 s14, s13, 15')
    a.e('s_add_u32 s60, s8, s14')
    a.e('s_add_u32 s61, s60, 16384')
    a.e('v_mul_u32_u24 v8, 144, v4')
    a.e('v_lshl_add_u32 v8, v5, 3, v8')
    a.e(f's_mul_i32 s14, s13, {32*144}')
    a.e('s_add_u32 s14, s14, s9')
    a.e(f's_add_u32 s14, s14, {STASH}')
    a.e('v_add_u32 v8, s14, v8')
    a.e('ds_read_b64 v[10:11], v8')
    a.e(f'ds_read_b64 v[12:13], v8 offset:{16*144}')
    a.e('s_nop 7')
    for t in range(10, 16):
        a.e(f'ds_write_b128 v7, {accr(t)} offset:{1024*t}')
    a.e('v_lshl_add_u32 v7, v2, 11, v3')
    a.e('v_add_u32 v9, 65536, v7')
    a.e('s_waitcnt lgkmcnt(0)')
    if TAILDBG: st.setk(4); st.stamp(force=True)
    a.e('s_barrier')
    if TAILDBG: st.setk(5); st.stamp(force=True)
    R = 64
    for b in range(2):
        for p in range(8):
            r = R + 32*b + 4*p
            a.e(f'ds_read_b128 v[{r}:{r+3}], v{7 if p < 4 else 9} offset:{(p%4)*16384 + 1024*b}')
    a.e('s_waitcnt lgkmcnt(0)')
    for b in range(2):
        r = R + 32*b
        for stp in (16, 8, 4):
            for k in range(stp): a.e(f'v_add_f32 v{r+k}, v{r+k}, v{r+k+stp}')
        a.e(f'v_cvt_pk_bf16_f32 v{r+4}, v{r}, v{r+1}')
        a.e(f'v_cvt_pk_bf16_f32 v{r+5}, v{r+2}, v{r+3}')
        for k in range(2):
            a.e(f'v_lshlrev_b32 v{r+2*k}, 16, v{r+4+k}')
            a.e(f'v_and_b32 v{r+2*k+1}, 0xffff0000, v{r+4+k}')
            a.e(f'v_lshlrev_b32 v{r+8+2*k}, 16, v{10+2*b+k}')
            a.e(f'v_and_b32 v{r+8+2*k+1}, 0xffff0000, v{10+2*b+k}')
        for j in range(4): a.e(f'v_add_f32 v{r+j}, v{r+j}, v{r+8+j}')
        a.e(f'v_cvt_pk_bf16_f32 v{r+4}, v{r}, v{r+1}')
        a.e(f'v_cvt_pk_bf16_f32 v{r+5}, v{r+2}, v{r+3}')
        a.e(f'buffer_store_dwordx2 v[{r+4}:{r+5}], v6, s[56:59], s{60+b} offen {OUTSC}')
    if STAMPS:
        a.e('s_waitcnt vmcnt(0)'); st.setk(12); st.stamp(force=True); st.dump(3, 2)
    a.label('KEND')
    a.e('s_endpgm')
    a.raw(kd(NAME, 256, accum=128))
    return a.text()

def AF(j, k):
    b = AFMAP[j] + 4*k
    return f'a[{b}:{b+3}]'
AFMAP = [0, 64, 16, 80, 32, 48]

def ln2(a, st):
    HV = 64
    S = 8; TM = 12; RB = 16
    a.e('v_lshlrev_b32 v48, 4, v3')
    a.e('v_lshl_add_u32 v49, v2, 9, v48')
    for i in range(4):
        a.e(f's_waitcnt vmcnt({12-4*i})')
        for c in range(4):
            for e in range(4):
                src = '0' if (i == 0 and c == 0) else f'v{S+e}'
                a.e(f'v_dot2_f32_bf16 v{S+e}, v{HV+16*i+4*c+e}, s80, {src}', dotc=True)
    st.stamp()
    def xpart(R, red):
        for e in range(4): a.e(f'v_mov_b32 v{TM+e}, v{R+e}')
        for e in range(4): a.e(f'v_permlane32_swap_b32 v{R+e}, v{TM+e}')
        for e in range(4): a.e(f'v_add_f32 v{R+e}, v{R+e}, v{TM+e}')
        a.e(f'v_add_u32 v50, {red}, v49')
        a.e(f'ds_write_b128 v50, v[{R}:{R+3}]')
    def xsum(R, red):
        a.e(f'v_add_u32 v51, {red}, v48')
        for w in range(8):
            a.e(f'ds_read_b128 v[{RB+4*w}:{RB+4*w+3}], v51 offset:{512*w}')
        a.e('s_waitcnt lgkmcnt(0)')
        for stp in (16, 8, 4):
            for k in range(stp): a.e(f'v_add_f32 v{RB+k}, v{RB+k}, v{RB+k+stp}')
        for e in range(4): a.e(f'v_mov_b32 v{R+e}, v{RB+e}')
    xpart(S, RED1)
    a.e('s_lshr_b32 s14, s3, 2')
    a.e('s_and_b32 s15, s4, 1')
    a.e('s_cmp_lg_u32 s14, s15')
    a.e('s_cbranch_scc1 NOHR')
    a.e('s_lshr_b32 s14, s4, 1')
    for i in range(4):
        if i < 3:
            a.e(f's_cmp_lg_u32 s14, {i}')
            a.e(f's_cbranch_scc1 HR{i+1}')
        for e in range(4):
            for c in range(4): a.e(f'v_mov_b32 v{RB+4*e+c}, v{HV+16*i+4*c+e}')
        if i < 3:
            a.e('s_branch HRS')
            a.label(f'HR{i+1}')
    a.label('HRS')
    a.e('v_and_b32 v50, 15, v3')
    a.e(f'v_mul_u32_u24 v50, {4*144}, v50')
    a.e('v_and_b32 v51, 7, v5')
    a.e('v_lshl_add_u32 v50, v51, 4, v50')
    a.e(f'v_add_u32 v50, {STASH}, v50')
    a.e('v_lshrrev_b32 v51, 4, v3')
    a.e('s_and_b32 s15, s7, 1')
    a.e('v_cmp_eq_u32 vcc, s15, v51')
    a.e('s_and_saveexec_b64 s[30:31], vcc')
    for e in range(4):
        a.e(f'ds_write_b128 v50, v[{RB+4*e}:{RB+4*e+3}] offset:{144*e}')
    a.e('s_mov_b64 exec, s[30:31]')
    a.label('NOHR')
    a.e('s_waitcnt lgkmcnt(0)')
    a.e('s_barrier')
    xsum(S, RED1)
    NM = 52; DL = 56
    for e in range(4): a.e(f'v_mul_f32 v{S+e}, {fh(-1.0/512)}, v{S+e}')
    for e in range(0, 4, 2): a.e(f'v_cvt_pk_bf16_f32 v{TM+e}, v{S+e}, v{S+e+1}')
    for e in range(0, 4, 2):
        a.e(f'v_lshlrev_b32 v{NM+e}, 16, v{TM+e}')
        a.e(f'v_and_b32 v{NM+e+1}, 0xffff0000, v{TM+e}')
    for e in range(4): a.e(f'v_sub_f32 v{DL+e}, v{NM+e}, v{S+e}')
    Q2 = 8; DT = 16; OUT = 32
    a.e(f'v_mul_u32_u24 v50, {XB}, v3')
    a.e('v_lshl_add_u32 v50, v5, 4, v50')
    for k in range(8): a.e(f'v_mov_b32 v{Q2+k}, 0')
    for i in range(4):
        for e2 in range(2):
            idx = [(c, e) for e in (2*e2, 2*e2+1) for c in range(4)]
            for k, (c, e) in enumerate(idx):
                r = HV+16*i+4*c+e
                a.e(f'v_dot2_f32_bf16 v{DT+2*k}, v{r}, s81, v{NM+e}')
                a.e(f'v_dot2_f32_bf16 v{DT+2*k+1}, v{r}, s82, v{NM+e}')
            for k, (c, e) in enumerate(idx):
                r = HV+16*i+4*c+e
                a.e(f'v_pk_fma_f32 v[{Q2+2*e}:{Q2+2*e+1}], v[{DT+2*k}:{DT+2*k+1}], v[{DT+2*k}:{DT+2*k+1}], v[{Q2+2*e}:{Q2+2*e+1}]')
                if EXACT: a.e(f'v_cvt_pk_bf16_f32 v{r}, v{DT+2*k}, v{DT+2*k+1}')
                else: a.e(f'v_cvt_pk_bf16_f32 v{OUT+8*(e2^(i&1)^(i&1))+4*(e&1)+c + (16 if False else 0)}, v{DT+2*k}, v{DT+2*k+1}')
            if not EXACT:
                for e in (2*e2, 2*e2+1):
                    o = OUT + 8*e2 + 4*(e&1)
                    a.e(f'ds_write_b128 v50, v[{o}:{o+3}] offset:{e*XA + 256*i}')
    Q = 60
    for e in range(4): a.e(f'v_add_f32 v{Q+e}, v{Q2+2*e}, v{Q2+2*e+1}')
    xpart(Q, RED2)
    a.e('s_waitcnt lgkmcnt(0)')
    a.e('s_barrier')
    global qfin
    def qfin():
        Q = 8; DL = 24
        a.e(f'ds_read_b128 v[8:11], v23')
        a.e(f'ds_read_b128 v[12:15], v23 offset:512')
        a.e(f'ds_read_b128 v[16:19], v23 offset:1024')
        a.e('s_waitcnt lgkmcnt(0)')
        for w in range(3, 9, 2):
            for e in range(4): a.e(f'v_add_f32 v{12+e}, v{12+e}, v{16+e}')
            for e in range(4): a.e(f'v_add_f32 v{8+e}, v{8+e}, v{12+e}')
            if w < 8:
                a.e(f'ds_read_b128 v[12:15], v23 offset:{512*w}')
                if w + 1 < 8: a.e(f'ds_read_b128 v[16:19], v23 offset:{512*(w+1)}')
                else:
                    for e in range(4): a.e(f'v_mov_b32 v{16+e}, 0')
                a.e('s_waitcnt lgkmcnt(0)')
        for e in range(4): a.e(f'v_add_f32 v{8+e}, v{8+e}, v{12+e}')
        for e in range(4): a.e(f'v_mul_f32 v{DL+e}, v{DL+e}, v{DL+e}')
        a.e(f's_mov_b32 s15, {fh(1.0/512)}')
        for e in range(4): a.e(f'v_fma_f32 v{Q+e}, v{Q+e}, s15, -v{DL+e}')
        for e in range(4): a.e(f'v_max_f32 v{Q+e}, 0, v{Q+e}')
        for e in range(4): a.e(f'v_cvt_pk_bf16_f32 v{Q+e}, v{Q+e}, v{Q+e}')
        for e in range(4): a.e(f'v_and_b32 v{Q+e}, 0xffff0000, v{Q+e}')
        for e in range(4): a.e(f'v_add_f32 v{Q+e}, {fh(1e-5)}, v{Q+e}')
        for e in range(4): a.e(f'v_cvt_pk_bf16_f32 v{Q+e}, v{Q+e}, v{Q+e}')
        for e in range(4): a.e(f'v_and_b32 v{Q+e}, 0xffff0000, v{Q+e}')
        for e in range(4): a.e(f'v_sqrt_f32 v{Q+e}, v{Q+e}')
        for e in range(4): a.e(f'v_cvt_pk_bf16_f32 v{Q+e}, v{Q+e}, v{Q+e}')
        for e in range(4): a.e(f'v_and_b32 v{Q+e}, 0xffff0000, v{Q+e}')
        for e in range(4): a.e(f'v_rcp_f32 v{Q+e}, v{Q+e}')
        a.e(f'v_add_u32 v22, {RSL-RED2}, v23')
        a.e(f'ds_write_b128 v22, v[{Q}:{Q+3}]')
        a.e('s_waitcnt lgkmcnt(0)')
        for lam in range(8): a.e(f'ds_read_b32 v{8+2*lam}, v31 offset:{64*lam}')
        a.e('s_waitcnt lgkmcnt(0)')
    assert not EXACT
    a.e(f'v_add_u32 v23, {RED2}, v48')
    for e in range(4): a.e(f'v_mov_b32 v{24+e}, v{DL+e}')
    a.e('v_and_b32 v3, 15, v1')
    a.e('v_lshrrev_b32 v4, 4, v1')
    a.e('v_and_b32 v5, 3, v3')
    a.e(f'v_mul_u32_u24 v5, {XA}, v5')
    a.e('v_lshrrev_b32 v6, 2, v3')
    a.e(f'v_mul_u32_u24 v6, {XB}, v6')
    a.e('v_add_u32 v5, v5, v6')
    a.e('v_lshl_add_u32 v28, v4, 4, v5')
    a.e(f'v_add_u32 v29, {4*4*XB}, v28')
    a.e(f'v_mul_u32_u24 v30, {172*256}, v4')
    a.e('v_lshl_add_u32 v30, v3, 4, v30')
    a.e('v_lshlrev_b32 v31, 2, v3')
    a.e(f'v_add_u32 v31, {RSL}, v31')
    a.e('v_lshlrev_b32 v7, 4, v1')
    a.e('s_waitcnt lgkmcnt(0)')
    st.stamp()
    if EXACT: a.e('s_barrier')

def gemm1(a, nt, nk):
    st = GST
    XF = 32; ACC = 64
    def rdgrp(ks, g):
        for k in range(4):
            r = XF + 16*g + 4*k
            a.e(f'ds_read_b128 v[{r}:{r+3}], v{28+g} offset:{k*4*XB + 64*ks}')
    def mfgrp(ks, g):
        for k in range(4):
            lam = 4*g + k
            for t in range(nt):
                acc = ACC + 32*t + 4*lam
                src = '0' if ks == 0 else f'v[{acc}:{acc+3}]'
                a.e(f'v_mfma_f32_16x16x32_bf16 v[{acc}:{acc+3}], a[{64*t+4*ks}:{64*t+4*ks+3}], v[{XF+16*g+4*k}:{XF+16*g+4*k+3}], {src}')
    def wd(j):
        for k in range(4):
            a.e(f'buffer_load_dwordx4 {AF(j,k)}, v7, s[48:51], s{60+k} offen offset:0 {SC}')
        for k in range(4): a.e(f's_add_u32 s{60+k}, s{60+k}, 8192')
    free_after = [(AFMAP[j]//4 + 3) if AFMAP[j] < 64 else ((AFMAP[j]-64)//4 + 3 if nt == 2 else -1) for j in range(nk)]
    sched = []; cur = -1
    for j in range(nk):
        cur = max(cur, free_after[j]); sched.append(cur)
    rdgrp(0, 0)
    for ks in range(16):
        rdgrp(ks, 1)
        a.e('s_waitcnt lgkmcnt(4)')
        mfgrp(ks, 0)
        if ks < 15:
            rdgrp(ks+1, 0)
            a.e('s_waitcnt lgkmcnt(4)')
        else:
            a.e('s_waitcnt lgkmcnt(0)')
        mfgrp(ks, 1)
        for j in range(nk):
            if sched[j] == ks and ks < 15: wd(j)
        if ks == 1: qfin()
    if G1DBG: kk0 = st.k; st.setk(1); st.stamp(force=True); st.setk(kk0)
    for j in range(nk):
        if sched[j] >= 15: wd(j)
    if G1DBG: kk0 = st.k; st.setk(2); st.stamp(force=True); st.setk(kk0)
    for t in range(nt):
        ts = 's10' if t == 0 else 's11'
        a.e('s_mul_i32 s14, s6, 1376')
        a.e(f's_add_u32 s14, s14, {ts}')
        a.e('s_lshl_b32 s14, s14, 8')
        for half in range(2):
            ob = 24 + 0
            OUTR = 32 + 4*((2*t+half) % 4)
            for l4 in range(4):
                lam = 4*half + l4
                acc = ACC + 32*t + 4*lam
                b = 48 + 8*(lam % 2)
                for k in (0, 2):
                    a.e(f'v_pk_mul_f32 v[{acc+k}:{acc+k+1}], v[{acc+k}:{acc+k+1}], v[{8+2*lam}:{9+2*lam}] op_sel:[0,0] op_sel_hi:[1,0]')
                a.e(f'v_cvt_pk_bf16_f32 v{b}, v{acc}, v{acc+2}')
                a.e(f'v_cvt_pk_bf16_f32 v{b+1}, v{acc+1}, v{acc+3}')
                a.e(f'v_pk_max_i16 v{b}, v{b}, 0')
                a.e(f'v_lshlrev_b32 v{b+4}, 16, v{b+1}')
                a.e(f'v_and_b32 v{b+5}, 0xffff0000, v{b+1}')
                a.e(f'v_lshlrev_b32 v{b+2}, 16, v{b}')
                a.e(f'v_and_b32 v{b+3}, 0xffff0000, v{b}')
                a.e(f'v_mul_f32 v{b+2}, v{b+2}, v{b+4}')
                a.e(f'v_mul_f32 v{b+3}, v{b+3}, v{b+5}')
                a.e(f'v_cvt_pk_bf16_f32 v{OUTR+l4}, v{b+2}, v{b+3}')
            a.e(f'v_permlane16_swap_b32 v{OUTR}, v{OUTR+1}')
            a.e(f'v_permlane16_swap_b32 v{OUTR+2}, v{OUTR+3}')
            a.e(f'v_permlane32_swap_b32 v{OUTR}, v{OUTR+2}')
            a.e(f'v_permlane32_swap_b32 v{OUTR+1}, v{OUTR+3}')
            lab = f'HS_{nt}{nk}{t}{half}'
            if not LOCAL:
                a.e(f'buffer_store_dwordx4 v[{OUTR}:{OUTR+3}], v30, s[56:59], s14 offen {SC}')
                if half == 0: a.e(f's_add_u32 s14, s14, {4*172*256}')
                continue
            a.e('s_cmp_eq_u32 s26, 1')
            a.e(f's_cbranch_scc1 {lab}a')
            a.e(f'buffer_store_dwordx4 v[{OUTR}:{OUTR+3}], v30, s[56:59], s14 offen {SC}')
            a.e(f's_branch {lab}b')
            a.label(f'{lab}a')
            a.e('s_nop 1')
            a.e(f'buffer_store_dwordx4 v[{OUTR}:{OUTR+3}], v30, s[56:59], s14 offen')
            a.label(f'{lab}b')
            if half == 0: a.e(f's_add_u32 s14, s14, {4*172*256}')

def build():
    hdr = open('sequential_preLN__ssm_conv_s4d__glu_gated_reglu__prompt.s.ref').read().split('\n')
    cm = [l for l in hdr if l.startswith(';') and '@launch' not in l]
    L = [f'; @launch grid=({GRID},1,1) block=(512,1,1) lds={LDS}']
    return '\n'.join(cm + L) + '\n.amdgcn_target "amdgcn-amd-amdhsa--gfx950"\n.text\n' + gen()
if __name__ == '__main__':
    out = sys.argv[1] if len(sys.argv) > 1 else 'fused14.s'
    open(out, 'w').write(build())
```

```python
import sys
from gen_common import *
LOG2E = 1.4426950408889634
def _split():
    m, e = math.frexp(LOG2E)
    hi = math.floor(m * 65536 + 0.5) / 65536 * 2**e
    return hi, (LOG2E - hi) * math.log(2.0)
C_HI, C_LO2 = _split()
FPL = int(os.environ.get('FPL', '1'))
MAPX = int(os.environ.get('MAPX', '2'))
P2DBG = os.environ.get('P2DBG', '') != ''
LOCAL = os.environ.get('LOCAL', '') != ''
OUTSC = os.environ.get('OUTSC', '')
G1DBG = os.environ.get('G1DBG', '') != ''
TAILDBG = os.environ.get('TAILDBG', '') != ''
JOBDBG = os.environ.get('JOBDBG', '') != ''
SLEEP = int(os.environ.get('SLEEP', '4'))
POLLSC = os.environ.get('POLLSC', 'sc1')
EXACT = os.environ.get('EXACT', '') != ''

NAME = 'sequential_preLN__ssm_conv_s4d__glu_gated_reglu__prompt_kernel'
GRID = 256
KG = 96*544
TBL = 2*KG
RL = TBL + 4096
KSL = RL + 2*4224
STG = 117248
LNT = STG + 2*17408
CH = 40960; KCS = 4160; UB = 33280
XA = 1088; XB = 4384; XSZ = 32*XB
RED1 = XSZ; RED2 = XSZ + 4096; RSL = XSZ + 8192
STASH = XSZ + 8192 + 512
LDS = 161536
SC = 'sc1'
X2S = 8448; H2S = 8448; WGS = 16640; H2N = 0x280000
FL = 0x830000
LOCW = KSL + 16
NJ_GU = 172; NJ_WD = 192; NJ = NJ_GU + NJ_WD

def gen():
    a = Asm()
    a.raw(head(NAME))
    st = Stamper(a, 0, base=83); st.stamp()
    global GST
    GST = st
    load_kernargs(a)
    a.e(f's_cmp_ge_u32 s2, {GRID}')
    a.e('s_cbranch_scc1 KEND')
    a.e('v_and_b32 v1, 63, v0')
    a.e('v_lshrrev_b32 v2, 6, v0')
    a.e('s_nop 0')
    a.e('v_readfirstlane_b32 s3, v2')
    a.e('s_waitcnt lgkmcnt(0)')
    srd(a, 72, 40, 41, 256)
    a.e('s_lshl_b32 s76, s2, 3')
    a.e('s_add_u32 s76, s76, s3')
    a.e('s_cmp_lg_u32 s76, 5')
    a.e('s_cbranch_scc1 NONONCE')
    a.e('s_memrealtime s[76:77]')
    a.e('s_waitcnt lgkmcnt(0)')
    a.e('s_lshl_b32 s76, s76, 6')
    a.e('s_or_b32 s76, s76, 0x40000000')
    a.e('v_mov_b32 v5, s76')
    a.e('v_mov_b32 v6, 0')
    a.e('s_mov_b64 exec, 1')
    a.e('buffer_store_dword v5, v6, s[72:75], 0 offen sc0 sc1')
    a.e('s_mov_b64 exec, -1')
    a.label('NONONCE')
    srd(a, 64, 16, 17, 0x200000)
    a.e('s_lshl_b32 s76, s2, 13')
    a.e('s_lshl_b32 s77, s3, 10')
    a.e('s_add_u32 s76, s76, s77')
    a.e('v_lshlrev_b32 v20, 4, v1')
    a.e('buffer_load_dwordx4 v[24:27], v20, s[64:67], s76 offen')
    a.e('v_lshrrev_b32 v21, 4, v0')
    a.e('v_lshlrev_b32 v21, 10, v21')
    a.e('v_and_b32 v22, 15, v0')
    a.e('v_lshl_add_u32 v21, v22, 4, v21')
    a.e('s_lshr_b32 s76, s2, 2')
    a.e('s_lshl_b32 s76, s76, 15')
    a.e('s_and_b32 s77, s2, 3')
    a.e('s_lshl_b32 s77, s77, 8')
    a.e('s_add_u32 s76, s76, s77')
    a.e('buffer_load_dwordx4 v[108:111], v21, s[64:67], s76 offen')
    srd(a, 44, 18, 19, 131072); srd(a, 48, 20, 21, 131072); srd(a, 52, 22, 23, 131072); srd(a, 56, 24, 25, 131072); srd(a, 60, 26, 27, 1024)
    a.e('s_lshr_b32 s4, s3, 2')
    a.e('s_lshl_b32 s5, s2, 1')
    a.e('s_add_u32 s5, s5, s4')
    a.e('s_lshl_b32 s76, s5, 8')
    a.e('s_lshl_b32 s77, s5, 1')
    a.e('v_and_b32 v3, 127, v0')
    a.e('v_lshlrev_b32 v5, 1, v3')
    a.e('v_lshlrev_b32 v6, 2, v1')
    a.e('v_mov_b32 v7, s77')
    a.e('buffer_load_ushort v10, v5, s[44:47], s76 offen')
    a.e('buffer_load_ushort v11, v5, s[48:51], s76 offen')
    a.e('buffer_load_ushort v12, v5, s[52:55], s76 offen')
    a.e('buffer_load_ushort v13, v5, s[56:59], s76 offen')
    a.e('buffer_load_dword v14, v6, s[52:55], s76 offen')
    a.e('buffer_load_dword v15, v6, s[56:59], s76 offen')
    a.e('buffer_load_ushort v16, v7, s[60:63], 0 offen')
    a.e('s_mov_b32 s80, 0x3f803f80')
    a.e('s_mov_b32 s81, 0x00003f80')
    a.e('s_mov_b32 s82, 0x3f800000')
    G = 32; O = 64
    STG2 = STG + 43*272
    a.e('s_cmp_ge_u32 s3, 6')
    a.e('s_cbranch_scc1 JL_WD')
    a.e('s_cmp_ge_u32 s3, 3')
    a.e('s_cselect_b32 s70, 1, 0')
    a.e('s_cselect_b32 s44, s34, s32')
    a.e('s_cselect_b32 s45, s35, s33')
    a.e('s_and_b32 s45, s45, 0xffff')
    a.e(f's_mov_b32 s46, {512*2752}')
    a.e('s_mov_b32 s47, 0x00020000')
    a.e('s_mul_i32 s71, s70, 3')
    a.e('s_sub_u32 s71, s3, s71')
    a.e('s_mul_i32 s76, s71, 14')
    a.e('s_min_u32 s77, s71, 1')
    a.e('s_add_u32 s76, s76, s77')
    a.e('s_add_u32 s77, s76, 13')
    a.e('s_cmp_eq_u32 s71, 0')
    a.e('s_cselect_b32 s77, 14, s77')
    a.e('v_add_u32 v17, s76, v1')
    a.e('v_min_u32 v17, s77, v17')
    a.e('s_and_b32 s76, s2, 3')
    a.e('s_mul_i32 s76, s76, 43')
    a.e('v_add_u32 v18, s76, v17')
    a.e('s_lshr_b32 s77, s2, 2')
    a.e('v_lshlrev_b32 v23, 4, v18')
    a.e(f's_mul_i32 s76, s77, {8*2752}')
    for j in range(8):
        a.e(f'buffer_load_dwordx4 v[{G+4*j}:{G+4*j+3}], v23, s[44:47], s76 offen')
        if j < 7: a.e('s_add_u32 s76, s76, 2752')
    a.e(f'v_mul_u32_u24 v19, {WGS}, v18')
    a.e('s_lshl_b32 s77, s77, 8')
    a.e('v_add_u32 v19, s77, v19')
    a.e('v_mul_u32_u24 v18, 272, v17')
    a.e('s_lshl_b32 s77, s70, 4')
    a.e(f's_add_u32 s77, s77, {STG}')
    a.e('v_add_u32 v18, s77, v18')
    a.e('s_mov_b32 s70, 32')
    a.e('s_branch JL_DONE')
    a.label('JL_WD')
    srd(a, 44, 36, 37, 1376*1024)
    a.e('s_sub_u32 s71, s3, 6')
    a.e('s_mul_i32 s76, s71, 22')
    a.e('s_add_u32 s77, s76, 20')
    a.e('s_cmp_eq_u32 s71, 0')
    a.e('s_cselect_b32 s77, 21, s77')
    a.e('v_add_u32 v17, s76, v1')
    a.e('v_min_u32 v17, s77, v17')
    a.e('s_mul_i32 s76, s2, 43')
    a.e('v_add_u32 v18, s76, v17')
    a.e('v_lshrrev_b32 v19, 6, v18')
    a.e('v_and_b32 v18, 63, v18')
    a.e('v_lshlrev_b32 v23, 13, v19')
    a.e('v_lshl_add_u32 v23, v18, 4, v23')
    a.e('s_movk_i32 s76, 0x1000')
    for j in range(8):
        so = 's76' if j >= 4 else '0'
        a.e(f'buffer_load_dwordx4 v[{G+4*j}:{G+4*j+3}], v23, s[44:47], {so} offen offset:{(j%4)*1024}')
    a.e('v_lshlrev_b32 v19, 8, v19')
    a.e('v_lshrrev_b32 v23, 1, v18')
    a.e('v_mul_u32_u24 v23, 44032, v23')
    a.e('v_add_u32 v19, v19, v23')
    a.e('v_and_b32 v18, 1, v18')
    a.e('v_lshl_add_u32 v19, v18, 7, v19')
    a.e('v_mul_u32_u24 v18, 144, v17')
    a.e(f'v_add_u32 v18, {STG2}, v18')
    a.e('s_mov_b32 s70, 16')
    a.label('JL_DONE')
    a.e('s_mov_b32 s78, 0x05040100')
    a.e('s_mov_b32 s79, 0x07060302')
    a.e('s_waitcnt vmcnt(15)')
    a.e('v_and_b32 v21, 15, v0')
    a.e(f'v_mul_u32_u24 v21, {4*144}, v21')
    a.e('v_lshrrev_b32 v22, 4, v0')
    a.e('v_lshl_add_u32 v21, v22, 2, v21')
    a.e(f'v_add_u32 v21, {LNT}, v21')
    for c in range(4): a.e(f'ds_write_b32 v21, v{108+c} offset:{144*c}')
    S = 28; TM = 29; Q = 30
    for c in range(4):
        src = '0' if c == 0 else f'v{S}'
        a.e(f'v_dot2_f32_bf16 v{S}, v{24+c}, s80, {src}', dotc=True)
    allreduce64(a, [S], [TM])
    a.e(f'v_mul_f32 v{S}, {fh(-1.0/512)}, v{S}')
    DD = 100
    for c in range(4):
        a.e(f'v_dot2_f32_bf16 v{DD+2*c}, v{24+c}, s81, v{S}')
        a.e(f'v_dot2_f32_bf16 v{DD+2*c+1}, v{24+c}, s82, v{S}')
    a.e(f'v_mul_f32 v{Q}, v{DD}, v{DD}')
    for k in range(1, 8): a.e(f'v_fmac_f32 v{Q}, v{DD+k}, v{DD+k}')
    allreduce64(a, [Q], [TM])
    a.e(f'v_mul_f32 v{Q}, {fh(1.0/512)}, v{Q}')
    a.e(f'v_cvt_pk_bf16_f32 v{S}, v{S}, v{Q}')
    a.e(f'v_and_b32 v{Q}, 0xffff0000, v{S}')
    a.e(f'v_add_f32 v{Q}, {fh(1e-5)}, v{Q}')
    a.e(f'v_cvt_pk_bf16_f32 v{Q}, v{Q}, v{Q}')
    a.e(f'v_and_b32 v{Q}, 0xffff0000, v{Q}')
    a.e(f'v_sqrt_f32 v{Q}, v{Q}')
    a.e(f'v_cvt_pk_bf16_f32 v{Q}, v{Q}, v{Q}')
    a.e(f'v_and_b32 v{Q}, 0xffff0000, v{Q}')
    a.e(f'v_and_b32 v{S}, 0xffff, v{S}')
    a.e(f'v_or_b32 v{S}, v{S}, v{Q}')
    a.e('v_lshlrev_b32 v22, 2, v2')
    a.e(f'v_add_u32 v22, {LNT+9216}, v22')
    a.e(f'ds_write_b32 v22, v{S}')
    a.e('v_lshrrev_b32 v22, 3, v0')
    a.e(f'v_mul_u32_u24 v21, 144, v22')
    a.e('v_and_b32 v31, 7, v0')
    a.e('v_lshl_add_u32 v21, v31, 4, v21')
    a.e(f'v_add_u32 v21, {LNT}, v21')
    a.e(f'v_mul_u32_u24 v22, {X2S}, v22')
    a.e('v_lshl_add_u32 v22, v31, 4, v22')
    a.e(f'v_mov_b32 v31, {LNT+9216}')
    srd_ws(a, 64, X2, 256*X2S); srd_ws(a, 60, ST, 8192)
    a.e('s_waitcnt vmcnt(0)')
    a.e('s_cmp_ge_u32 s3, 6')
    a.e('s_cbranch_scc1 JP_WD')
    for fi in range(8):
        o = O + 4*fi
        for kk in range(4):
            sel = 's79' if fi & 1 else 's78'
            a.e(f'v_perm_b32 v{o+kk}, v{G+4*(2*kk+1)+(fi>>1)}, v{G+4*(2*kk)+(fi>>1)}, {sel}')
        a.e(f'ds_write_b128 v18, v[{o}:{o+3}] offset:{32*fi}')
    a.e('v_and_b32 v18, 0xffffffe0, v18') if False else None
    a.e('s_cmp_ge_u32 s3, 3')
    a.e('s_cbranch_scc1 JP_DONE')
    a.e('ds_write_b32 v18, v19 offset:256')
    a.e('s_branch JP_DONE')
    a.label('JP_WD')
    for fi in range(8):
        o = O + 4*fi
        for kk in range(4):
            sel = 's79' if fi & 1 else 's78'
            a.e(f'v_perm_b32 v{o+kk}, v{G+4*(2*kk+1)+(fi>>1)}, v{G+4*(2*kk)+(fi>>1)}, {sel}')
        a.e(f'ds_write_b128 v18, v[{o}:{o+3}] offset:{16*fi}')
    a.e('ds_write_b32 v18, v19 offset:128')
    a.label('JP_DONE')
    a.e('v_lshrrev_b32 v17, 4, v0')
    a.e('v_mul_u32_u24 v17, 272, v17')
    a.e(f'v_add_u32 v17, {STG}, v17')
    a.e('v_and_b32 v18, 15, v0')
    a.e('v_lshlrev_b32 v18, 4, v18')
    a.e('v_add_u32 v19, v17, v18')
    a.e('v_lshrrev_b32 v23, 3, v0')
    a.e('v_min_u32 v23, 42, v23')
    a.e('v_mul_u32_u24 v23, 144, v23')
    a.e(f'v_add_u32 v23, {STG2}, v23')
    a.e('v_and_b32 v29, 7, v0')
    a.e('v_lshlrev_b32 v29, 4, v29')
    a.e('v_add_u32 v30, v23, v29')
    srd_ws(a, 52, WGU, 172*WGS); srd_ws(a, 56, WD, 32*43*1024)
    a.e('s_cmp_lg_u32 s3, 5')
    a.e('s_cbranch_scc1 NONL')
    a.e('v_mov_b32 v8, 0')
    a.e('buffer_load_dword v9, v8, s[72:75], 0 offen sc0 sc1')
    a.label('NONL')
    a.e('s_waitcnt lgkmcnt(0)')
    a.e('s_barrier')
    a.e('ds_read_b128 v[100:103], v19')
    a.e('ds_read_b32 v108, v17 offset:256')
    a.e(f'ds_read_b128 v[104:107], v19 offset:{32*272}')
    a.e(f'ds_read_b32 v109, v17 offset:{32*272+256}')
    a.e('ds_read_b128 v[24:27], v21')
    a.e('ds_read_b128 v[112:115], v31')
    a.e('ds_read_b128 v[116:119], v31 offset:16')
    a.e('s_and_b32 s76, s2, 3')
    a.e(f's_mul_i32 s76, s76, {64*X2S}')
    a.e('s_lshr_b32 s77, s2, 2')
    a.e('s_lshl_b32 s77, s77, 7')
    a.e('s_add_u32 s76, s76, s77')
    a.e('s_lshl_b32 s77, s2, 5')
    a.e('v_mov_b32 v31, 0')
    a.e('s_waitcnt lgkmcnt(2)')
    a.e(f'buffer_store_dwordx4 v[24:27], v22, s[64:67], s76 offen {SC}')
    a.e('s_cmp_lg_u32 s3, 0')
    a.e('s_cbranch_scc1 NOSTAT')
    a.e('s_waitcnt lgkmcnt(0)')
    a.e('s_mov_b64 exec, 1')
    a.e(f'buffer_store_dwordx4 v[112:115], v31, s[60:63], s77 offen {SC}')
    a.e(f'buffer_store_dwordx4 v[116:119], v31, s[60:63], s77 offen offset:16 {SC}')
    a.e('s_mov_b64 exec, -1')
    a.label('NOSTAT')
    if JOBDBG: st.setk(7); st.stamp(force=True)
    a.e('v_add_u32 v108, v108, v18')
    a.e('v_add_u32 v109, v109, v18')
    a.e('v_mov_b32 v47, 0x7f000000')
    a.e('v_cmp_gt_u32 vcc, 176, v0')
    a.e('v_cndmask_b32 v109, v47, v109, vcc')
    a.label('P2')
    st.setk(1); st.stamp()
    a.e('s_bfe_u32 s6, s3, 0x10001')
    a.e(f's_mov_b32 s64, {fh(512.0)}')
    a.e(f's_mov_b32 s65, {fh(128.0)}')
    a.e(f's_mov_b32 s66, {fh(4.0)}')
    a.e(f's_mov_b32 s67, {fh(64.0)}')
    a.e('s_cmp_eq_u32 s6, 0')
    a.e('s_cmov_b32 s64, 0')
    a.e(f's_cmov_b32 s65, {fh(32.0)}')
    a.e(f's_cmov_b32 s66, {fh(1.0)}')
    a.e(f's_cmov_b32 s67, {fh(16.0)}')
    a.e(f's_mov_b32 s8, {fh(C_HI)}')
    a.e(f's_mov_b32 s9, {fh(C_LO2)}')
    a.e(f's_mul_i32 s10, s4, {KG}')
    a.e(f's_mul_i32 s11, s6, {16*544}')
    a.e('s_add_u32 s11, s11, s10')
    a.e(f's_mul_i32 s12, s6, {32*544}')
    a.e('s_add_u32 s12, s12, s10')
    a.e('v_lshlrev_b32 v20, 2, v3')
    a.e('v_add_u32 v21, s11, v20')
    a.e('v_add_u32 v22, s12, v20')
    for r in (10, 11, 12, 13, 16): a.e(f'v_lshlrev_b32 v{r}, 16, v{r}')
    a.e('v_and_b32 v14, 0x7fff7fff, v14')
    a.e('v_and_b32 v15, 0x7fff7fff, v15')
    a.e('v_pk_max_u16 v14, v14, v15')
    a.e('v_lshrrev_b32 v15, 16, v14')
    a.e('v_and_b32 v14, 0xffff, v14')
    a.e('v_max_u32 v14, v14, v15')
    def expb(dst, x, t1, t2):
        a.e(f'v_mul_f32 v{t1}, s8, v{x}')
        a.e(f'v_mul_f32 v{t2}, s9, v{x}')
        a.e(f'v_exp_f32 v{t1}, v{t1}')
        a.e(f'v_fma_f32 v{t1}, v{t1}, v{t2}, v{t1}')
        a.e(f'v_cvt_pk_bf16_f32 v{t1}, v{t1}, v{t1}')
        a.e(f'v_and_b32 v{dst}, 0xffff0000, v{t1}')
    expb(16, 16, 24, 25); expb(10, 10, 26, 27)
    allreduce64(a, [14], [15], op='v_max_u32')
    for ins in ('v_lshrrev_b32 v14, 7, v14', 'v_max_u32 v14, 1, v14', 'v_min_u32 v14, 0xfd, v14', 'v_lshrrev_b32 v15, 23, v16',
                'v_max_u32 v15, 1, v15', 'v_min_u32 v15, 0xfd, v15', 'v_sub_u32 v24, 254, v14', 'v_lshlrev_b32 v24, 23, v24',
                'v_sub_u32 v25, 254, v15', 'v_lshlrev_b32 v25, 23, v25', 'v_lshlrev_b32 v14, 23, v14', 'v_lshlrev_b32 v15, 23, v15',
                'v_mul_f32 v14, v14, v15', 'v_add_f32 v14, v14, v14', 'v_mul_f32 v12, v12, v24', 'v_mul_f32 v13, v13, v24',
                'v_mul_f32 v25, v16, v25', 'v_mul_f32 v12, v12, v25', 'v_mul_f32 v13, v13, v25', 'v_mul_f32 v10, v10, v16',
                f'v_mul_f32 v10, {fh(-LOG2E)}, v10', 'v_mul_f32 v11, v11, v16', f'v_mul_f32 v11, {fh(1.0/(2*math.pi))}, v11'):
        a.e(ins)
    a.e('s_lshl_b32 s13, s4, 2')
    a.e(f's_add_u32 s13, s13, {KSL}')
    a.e('v_mov_b32 v7, s13')
    a.e('ds_write_b32 v7, v14')
    PW = 5
    def spin_head(tag):
        a.e('s_mov_b32 s15, 0x40000')
        a.label(f'WL_{tag}')
    def spin_tail(tag):
        a.e('s_sub_u32 s15, s15, 1')
        a.e('s_cmp_eq_u32 s15, 0')
        a.e(f's_cbranch_scc1 WD_{tag}')
        a.e('s_and_b64 vcc, vcc, exec')
        a.e(f's_cbranch_vccz WD_{tag}')
        if SLEEP: a.e(f's_sleep {SLEEP}')
        a.e(f's_branch WL_{tag}')
        a.label(f'WD_{tag}')
        a.e('s_mov_b64 exec, -1')
    def do_signal(val, tag):
        a.e(f's_cmp_lg_u32 s3, {PW}')
        a.e(f's_cbranch_scc1 SIG_{tag}')
        a.e('v_mov_b32 v6, 0')
        if val == 1:
            a.e('s_mov_b64 exec, 1')
            a.e('v_mov_b32 v5, v9')
            a.e('v_cmp_ne_u32 vcc, 0, v5')
            a.e('s_and_b64 vcc, vcc, exec')
            a.e('s_cbranch_vccnz WD_N')
            spin_head('N')
            a.e('buffer_load_dword v5, v6, s[72:75], 0 offen sc0 sc1')
            a.e('s_waitcnt vmcnt(0)')
            a.e('v_cmp_eq_u32 vcc, 0, v5')
            spin_tail('N')
            a.e('v_readfirstlane_b32 s25, v5')
            a.e('s_nop 3')
        a.e(f's_add_u32 s14, s25, {val}')
        a.e('s_add_u32 s14, s14, s27')
        a.e('v_mov_b32 v5, s14')
        a.e('s_mov_b64 exec, 1')
        a.e(f'buffer_store_dword v5, v6, s[76:79], s24 offen sc0 sc1')
        a.e('s_mov_b64 exec, -1')
        a.label(f'SIG_{tag}')
    def do_wait(val, nlanes, tag, off_sgpr=None):
        a.e(f's_cmp_lg_u32 s3, {PW}')
        a.e(f's_cbranch_scc1 WT_{tag}')
        a.e('v_lshlrev_b32 v5, 7, v1')
        a.e(f's_add_u32 s14, s25, {val}')
        grp = nlanes < 64
        if grp: a.e(f's_mov_b64 exec, {hx((1 << (4 if FPL == 4 else 16)) - 1)}')
        if FPL == 1 and not grp:
            a.e('v_add_u32 v20, 8192, v5'); a.e('v_add_u32 v21, 16384, v5'); a.e('v_add_u32 v22, 24576, v5')
        spin_head(tag)
        so = off_sgpr if off_sgpr else '0'
        if FPL == 4:
            a.e(f'buffer_load_dwordx4 v[16:19], v5, s[76:79], {so} offen {POLLSC}')
        elif grp:
            a.e(f'buffer_load_dword v16, v5, s[76:79], {so} offen {POLLSC}')
            a.e('s_waitcnt vmcnt(0)')
            for k in range(1, 4): a.e(f'v_mov_b32 v{16+k}, v16')
        else:
            for k, r in enumerate((5, 20, 21, 22)):
                a.e(f'buffer_load_dword v{16+k}, v{r}, s[76:79], 0 offen {POLLSC}')
        a.e('s_waitcnt vmcnt(0)')
        for k in range(4): a.e(f'v_subrev_u32 v{16+k}, s25, v{16+k}')
        for k in range(4): a.e(f'v_and_b32 v{52+k}, 0xffffffc7, v{16+k}')
        for k in range(4): a.e(f'v_subrev_u32 v{52+k}, {val}, v{52+k}')
        a.e('v_max3_u32 v52, v52, v53, v54')
        a.e('v_max_u32 v52, v52, v55')
        a.e(f'v_cmp_lt_u32 vcc, {4-val}, v52')
        spin_tail(tag)
        if tag == 'A':
            for k in range(4): a.e(f'v_and_b32 v{16+k}, 0x38, v{16+k}')
            for k in range(4): a.e(f'v_cmp_ne_u32 s[{64+2*k}:{65+2*k}], s27, v{16+k}')
            a.e('s_lshr_b32 s14, s18, 2')
            for k in range(1, 4):
                a.e(f's_cmp_eq_u32 s14, {k}')
                a.e(f's_cselect_b64 s[64:65], s[{64+2*k}:{65+2*k}], s[64:65]')
            a.e('s_and_b32 s14, s18, 3')
            a.e('s_lshl_b32 s14, s14, 4')
            a.e('s_lshr_b64 s[64:65], s[64:65], s14')
            a.e('s_and_b32 s64, s64, 0xffff')
            a.e('s_cmp_eq_u32 s64, 0')
            a.e('s_cselect_b32 s14, 1, 0')
            a.e('v_mov_b32 v5, s14')
            a.e(f'v_mov_b32 v6, {LOCW}')
            a.e('ds_write_b32 v6, v5')
            a.e('s_waitcnt lgkmcnt(0)')
        a.label(f'WT_{tag}')
    a.e('s_and_b32 s16, s2, 7')
    a.e('s_lshr_b32 s17, s2, 3')
    if MAPX == 2:
        a.e('s_lshr_b32 s18, s16, 1')
        a.e('s_lshl_b32 s18, s18, 2')
        a.e('s_and_b32 s19, s17, 3')
        a.e('s_add_u32 s18, s18, s19')
        a.e('s_and_b32 s19, s16, 1')
        a.e('s_lshl_b32 s19, s19, 3')
        a.e('s_lshr_b32 s20, s17, 2')
        a.e('s_add_u32 s19, s19, s20')
    elif MAPX:
        a.e('s_lshl_b32 s18, s16, 1')
        a.e('s_lshr_b32 s19, s17, 4')
        a.e('s_add_u32 s18, s18, s19')
        a.e('s_and_b32 s19, s17, 15')
    else:
        a.e('s_and_b32 s18, s16, 1')
        a.e('s_lshl_b32 s18, s18, 3')
        a.e('s_and_b32 s19, s17, 7')
        a.e('s_add_u32 s18, s18, s19')
        a.e('s_lshr_b32 s19, s16, 1')
        a.e('s_lshl_b32 s19, s19, 2')
        a.e('s_lshr_b32 s20, s17, 3')
        a.e('s_add_u32 s19, s19, s20')
    a.e('s_lshl_b32 s24, s18, 4')
    a.e('s_add_u32 s24, s24, s19')
    if FPL == 4:
        a.e('s_lshr_b32 s26, s24, 2')
        a.e('s_lshl_b32 s26, s26, 7')
        a.e('s_and_b32 s24, s24, 3')
        a.e('s_lshl_b32 s24, s24, 2')
        a.e('s_add_u32 s24, s24, s26')
    else:
        a.e('s_lshl_b32 s24, s24, 7')
    a.e('s_getreg_b32 s27, hwreg(HW_REG_XCC_ID, 0, 3)')
    a.e('s_lshl_b32 s27, s27, 3')
    FLS = 76
    srd_ws(a, FLS, FL, 32768)
    if P2DBG: st.setk(7); st.stamp(force=True)
    a.e('s_waitcnt vmcnt(0)')
    if P2DBG: st.setk(8); st.stamp(force=True)
    a.e('s_barrier')
    if P2DBG: st.setk(9); st.stamp(force=True)
    do_signal(1, 'A')
    if P2DBG: st.setk(10); st.stamp(force=True); st.setk(2)
    a.e(f'buffer_store_dwordx4 v[100:103], v108, s[52:55], 0 offen {SC}')
    a.e(f'buffer_store_dwordx4 v[104:107], v109, s[52:55], 0 offen {SC}')
    def cexp(dst, sp, conj, t):
        a.e(f'v_mul_f32 v{t}, s{sp}, v10')
        a.e(f'v_mul_f32 v{t+1}, s{sp}, v11')
        a.e(f'v_exp_f32 v{t}, v{t}')
        a.e(f'v_fract_f32 v{t+1}, v{t+1}')
        a.e(f'v_cos_f32 v{dst}, v{t+1}')
        a.e(f'v_sin_f32 v{dst+1}, v{t+1}')
        a.e(f'v_mul_f32 v{dst}, v{dst}, v{t}')
        if conj: a.e(f'v_mul_f32_e64 v{dst+1}, v{dst+1}, -v{t}')
        else: a.e(f'v_mul_f32 v{dst+1}, v{dst+1}, v{t}')
    def cmul(x, w, t):
        a.e(f'v_pk_mul_f32 v[{t}:{t+1}], v[{x}:{x+1}], v[{w}:{w+1}] op_sel:[0,0] op_sel_hi:[0,1]')
        a.e(f'v_pk_fma_f32 v[{x}:{x+1}], v[{x}:{x+1}], v[{w}:{w+1}], v[{t}:{t+1}] op_sel:[1,1,0] op_sel_hi:[1,0,1] neg_lo:[0,1,0]')
    X = 30; YA = 32; YB = 34; WX = 36; WY = 38; T0 = 40
    cexp(X, 64, False, T0); cexp(WX, 65, False, T0+2); cexp(WY, 66, True, T0+4); cexp(YB, 67, True, T0+6)
    cmul(X, 12, T0)
    a.e(f'v_mov_b32 v{YA}, 1.0')
    a.e(f'v_mov_b32 v{YA+1}, 0')
    P = 50
    for r in range(16):
        p = P + 3*(r % 2)
        a.e(f'v_cvt_pk_f16_f32 v{p}, v{X}, v{X+1}')
        a.e(f'v_cvt_pk_f16_f32 v{p+1}, v{YA}, v{YA+1}')
        a.e(f'v_cvt_pk_f16_f32 v{p+2}, v{YB}, v{YB+1}')
        a.e(f'ds_write_b32 v21, v{p} offset:{r*544}')
        a.e(f'ds_write_b32 v22, v{p+1} offset:{32*544 + r*544}')
        a.e(f'ds_write_b32 v22, v{p+2} offset:{32*544 + (16+r)*544}')
        if r < 15:
            cmul(X, WX, T0); cmul(YA, WY, T0+2); cmul(YB, WY, T0+4)
    a.e('s_and_b32 s7, s3, 1')
    a.e('v_and_b32 v3, 15, v1')
    a.e('v_lshrrev_b32 v4, 4, v1')
    a.e('v_mul_u32_u24 v7, 544, v3')
    a.e('v_lshl_add_u32 v7, v4, 4, v7')
    a.e(f's_mul_i32 s13, s7, {16*544}')
    a.e('s_add_u32 s13, s13, s12')
    a.e('v_add_u32 v8, s13, v7')
    a.e('v_add_u32 v9, s11, v7')
    a.e('s_lshl_b32 s13, s6, 10')
    a.e('s_lshl_b32 s14, s7, 5')
    a.e('s_add_u32 s13, s13, s14')
    a.e('s_lshl_b32 s14, s4, 11')
    a.e('s_add_u32 s13, s13, s14')
    a.e(f's_add_u32 s13, s13, {TBL}')
    a.e('v_lshlrev_b32 v20, 6, v3')
    a.e('v_lshl_add_u32 v20, v4, 3, v20')
    a.e('v_add_u32 v20, s13, v20')
    a.e('s_waitcnt lgkmcnt(0)')
    st.stamp()
    a.e('s_barrier')
    a.e('s_and_b32 s13, s2, 15')
    a.e('s_lshl_b32 s13, s13, 2')
    FA = 64; FB = 96; AC = 60
    for ks in range(8):
        a.e(f'ds_read_b128 v[{FA+4*ks}:{FA+4*ks+3}], v8 offset:{32*544 + 64*ks}')
        a.e(f'ds_read_b128 v[{FB+4*ks}:{FB+4*ks+3}], v9 offset:{64*ks}')
    for ks in range(8):
        a.e(f's_waitcnt lgkmcnt({14-2*ks})')
        src = '0' if ks == 0 else f'v[{AC}:{AC+3}]'
        a.e(f'v_mfma_f32_16x16x32_f16 v[{AC}:{AC+3}], v[{FA+4*ks}:{FA+4*ks+3}], v[{FB+4*ks}:{FB+4*ks+3}], {src}')
    a.e('v_and_b32 v23, 255, v0')
    a.e('v_lshlrev_b32 v21, 3, v23')
    a.e('v_sub_u32 v21, 2047, v21')
    I = 30
    for i in range(8): a.e(f'v_subrev_u32 v{I+i}, {i}, v21')
    for i in range(8): a.e(f'v_cvt_f32_u32 v{I+i}, v{I+i}')
    for i in range(0, 8, 2): a.e(f'v_cvt_pk_bf16_f32 v{40+i//2}, v{I+i}, v{I+i+1}')
    for i in range(0, 8, 2):
        a.e(f'v_lshlrev_b32 v{I+i}, 16, v{40+i//2}')
        a.e(f'v_and_b32 v{I+i+1}, 0xffff0000, v{40+i//2}')
    for i in range(8): a.e(f'v_cvt_u32_f32 v{I+i}, v{I+i}')
    a.e('s_lshl_b32 s14, s4, 11')
    a.e(f's_add_u32 s14, s14, {TBL}')
    for i in range(8):
        a.e(f'v_lshrrev_b32 v{40+i}, 2, v{I+i}')
        a.e(f'v_add_u32 v{40+i}, 384, v{40+i}')
        a.e(f'v_min_u32 v{I+i}, v{I+i}, v{40+i}')
        a.e(f'v_lshl_add_u32 v{I+i}, v{I+i}, 1, s14')
    a.e(f'v_cvt_pk_f16_f32 v50, v{AC}, v{AC+1}')
    a.e(f'v_cvt_pk_f16_f32 v51, v{AC+2}, v{AC+3}')
    a.e('ds_write_b64 v20, v[50:51]')
    a.e('s_mul_i32 s20, s19, 11')
    a.e('s_mul_i32 s21, s19, 10')
    a.e('s_add_u32 s21, s21, 12')
    a.e('s_min_u32 s20, s20, s21')
    a.e('s_cmp_lt_u32 s19, 12')
    a.e('s_cselect_b32 s21, 3, 2')
    a.e('s_add_u32 s22, s20, s3')
    a.e('s_add_u32 s23, s22, 8')
    a.e('s_waitcnt lgkmcnt(0)')
    do_wait(1, 64, 'A')
    a.e('s_waitcnt vmcnt(0)')
    a.e('s_barrier')
    do_signal(2, 'W')
    st.stamp()
    a.e(f'v_mov_b32 v5, {LOCW}')
    a.e('ds_read_b32 v5, v5')
    a.e('s_waitcnt lgkmcnt(0)')
    a.e('v_readfirstlane_b32 s26, v5')
    srd_ws(a, 44, X2, 256*X2S); srd_ws(a, 48, ST, 8192); srd(a, 60, 28, 29, 1024); srd_ws(a, 64, H2N, 256*H2S); srd_ws(a, 52, WGU, 172*WGS)
    a.e(f's_mul_i32 s68, s2, {H2S}')
    a.e('s_lshl_b32 s69, s2, 2')
    a.e(f's_mul_i32 s70, s2, {X2S}')
    XR = 8; UBF = 12; SR = 16
    a.e('v_lshlrev_b32 v28, 4, v0')
    a.e('v_mov_b32 v5, 0')
    a.e(f'buffer_load_dwordx4 v[{XR}:{XR+3}], v28, s[44:47], s70 offen {SC}')
    a.e(f'buffer_load_dwordx4 v[{SR}:{SR+3}], v28, s[48:51], 0 offen {SC}')
    a.e('buffer_load_dword v29, v5, s[60:63], s69 offen')
    a.e('v_lshlrev_b32 v7, 4, v1')
    def wloads(tile_s, abase):
        a.e(f's_mul_i32 s14, {tile_s}, {WGS}')
        for k4 in range(4):
            for k in range(4):
                r = abase + 4*(4*k4+k)
                a.e(f'buffer_load_dwordx4 a[{r}:{r+3}], v7, s[52:55], s14 offen offset:{k*1024} {SC}')
            if k4 < 3: a.e('s_add_u32 s14, s14, 4096')
    for i in range(8): a.e(f'ds_read_u16 v{40+i}, v{I+i}')
    a.e('s_mul_i32 s14, s4, 4224')
    a.e(f's_add_u32 s14, s14, {RL}')
    a.e('v_lshl_add_u32 v21, v23, 4, s14')
    for k in range(4): a.e(f'v_mov_b32 v{56+k}, 0')
    a.e('s_waitcnt lgkmcnt(0)')
    for k in range(4): a.e(f'v_lshl_or_b32 v{52+k}, v{41+2*k}, 16, v{40+2*k}')
    a.e('ds_write_b128 v21, v[52:55]')
    a.e('v_cmp_gt_u32 vcc, 8, v23')
    a.e('s_and_saveexec_b64 s[30:31], vcc')
    a.e('ds_write_b128 v21, v[56:59] offset:4096')
    a.e('s_mov_b64 exec, s[30:31]')
    a.e(f's_mul_i32 s14, s4, {CH}')
    a.e('v_lshl_add_u32 v22, v23, 4, s14')
    a.e('v_cmp_gt_u32 vcc, 160, v23')
    a.e('s_and_saveexec_b64 s[30:31], vcc')
    a.e(f'ds_write_b128 v22, v[56:59] offset:{UB}')
    a.e('s_mov_b64 exec, s[30:31]')
    a.e('s_waitcnt lgkmcnt(0)')
    a.e('s_barrier')
    a.e(f's_cmp_lg_u32 s3, {PW}')
    a.e('s_cbranch_scc1 NOAP')
    a.e('v_lshlrev_b32 v124, 7, v1')
    a.e('v_add_u32 v125, 8192, v124'); a.e('v_add_u32 v126, 16384, v124'); a.e('v_add_u32 v127, 24576, v124')
    for k in range(4):
        a.e(f'buffer_load_dword v{120+k}, v{124+k}, s[76:79], 0 offen {POLLSC}')
    a.label('NOAP')
    def copies(vr, roff, vw, woff):
        A = 32; B = 40; TA = 48; TB2 = 56
        a.e(f'ds_read_b128 v[{A}:{A+3}], v{vr} offset:{roff}')
        a.e(f'ds_read_b128 v[{A+4}:{A+7}], v{vr} offset:{roff+16}')
        a.e('s_waitcnt lgkmcnt(0)')
        for k in range(6): a.e(f'v_mov_b32 v{B+k}, v{A+k+1}')
        for k in range(6):
            a.e(f'v_alignbit_b32 v{TA+k}, v{A+k+1}, v{A+k}, 16')
            a.e(f'v_alignbit_b32 v{TB2+k}, v{A+k+2}, v{A+k+1}, 16')
        src = {0: A, 4: A+2, 2: B, 6: B+2, 1: TA, 5: TA+2, 3: TB2, 7: TB2+2}
        for s in (0, 4, 2, 6, 1, 5, 3, 7):
            a.e(f'ds_write_b128 v{vw}, v[{src[s]}:{src[s]+3}] offset:{woff + s*KCS}')
    copies(21, 0, 22, 0)
    a.e('v_cmp_gt_u32 vcc, 4, v23')
    a.e('s_and_saveexec_b64 s[30:31], vcc')
    a.e('s_cbranch_execz NOX')
    a.e('s_waitcnt lgkmcnt(0)')
    copies(21, 4096, 22, 4096)
    a.label('NOX')
    a.e('s_mov_b64 exec, s[30:31]')
    a.e('s_waitcnt vmcnt(0)')
    T = 64
    for l in range(4):
        a.e(f'v_lshlrev_b32 v{T+l}, 16, v{SR+l}')
        a.e(f'v_and_b32 v{T+4+l}, 0xffff0000, v{SR+l}')
    for l in range(4): a.e(f'v_rcp_f32 v{T+4+l}, v{T+4+l}')
    for l in range(4):
        a.e(f'v_dot2_f32_bf16 v{T+8+2*l}, v{XR+l}, s81, v{T+l}')
        a.e(f'v_dot2_f32_bf16 v{T+9+2*l}, v{XR+l}, s82, v{T+l}')
    for l in range(4): a.e(f'v_cvt_pk_bf16_f32 v{T+l}, v{T+8+2*l}, v{T+9+2*l}')
    for l in range(4):
        a.e(f'v_lshlrev_b32 v{T+8+2*l}, 16, v{T+l}')
        a.e(f'v_and_b32 v{T+9+2*l}, 0xffff0000, v{T+l}')
    for l in range(4):
        a.e(f'v_mul_f32 v{T+8+2*l}, v{T+8+2*l}, v{T+4+l}')
        a.e(f'v_mul_f32 v{T+9+2*l}, v{T+9+2*l}, v{T+4+l}')
    for l in range(4): a.e(f'v_cvt_pk_bf16_f32 v{UBF+l}, v{T+8+2*l}, v{T+9+2*l}')
    for l in range(4):
        a.e(f'v_lshlrev_b32 v{T+8+2*l}, 16, v{UBF+l}')
        a.e(f'v_and_b32 v{T+9+2*l}, 0xffff0000, v{UBF+l}')
    for c in range(2):
        for k in range(2):
            a.e(f'v_cvt_pk_f16_f32 v{T+2*c+k}, v{T+8+4*k+c}, v{T+10+4*k+c}')
    a.e('v_lshrrev_b32 v24, 3, v0')
    a.e('v_mul_u32_u24 v24, 80, v24')
    a.e('v_and_b32 v25, 7, v0')
    a.e('v_lshl_add_u32 v24, v25, 3, v24')
    a.e(f'v_add_u32 v25, {CH}, v24')
    a.e(f'ds_write_b64 v24, v[{T}:{T+1}] offset:{UB+32*80}')
    a.e(f'ds_write_b64 v25, v[{T+2}:{T+3}] offset:{UB+32*80}')
    a.e('v_lshlrev_b32 v27, 4, v1')
    a.e(f's_mul_i32 s60, s22, {WGS}')
    a.e(f's_mul_i32 s61, s23, {WGS}')
    a.e('s_cmp_ge_u32 s3, s21')
    a.e(f's_cselect_b32 s61, {hx(0x7f000000)}, s61')
    a.e('s_and_b32 s6, s3, 3')
    a.e('v_and_b32 v6, 31, v1')
    a.e('v_lshrrev_b32 v7, 5, v1')
    a.e('v_and_b32 v26, 7, v6')
    a.e('v_sub_u32 v26, 7, v26')
    a.e(f'v_mul_u32_u24 v26, {KCS}, v26')
    a.e('v_lshrrev_b32 v25, 3, v6')
    a.e('v_sub_u32 v25, 3, v25')
    a.e('v_add_u32 v25, v25, v7')
    a.e('v_lshl_add_u32 v26, v25, 4, v26')
    a.e('s_sub_u32 s7, 3, s6')
    a.e('s_lshl_b32 s13, s7, 6')
    a.e('s_add_u32 s13, s13, s14')
    a.e('v_add_u32 v26, s13, v26')
    a.e('v_mul_u32_u24 v30, 80, v6')
    a.e('v_lshl_add_u32 v30, v7, 4, v30')
    a.e('s_mul_i32 s13, s7, 80')
    a.e('s_add_u32 s13, s13, s14')
    a.e('v_add_u32 v30, s13, v30')
    a.e('v_mul_u32_u24 v31, 144, v6')
    a.e('v_lshl_add_u32 v31, v7, 4, v31')
    a.e('s_mul_i32 s13, s6, 9216')
    a.e('s_add_u32 s13, s13, s14')
    a.e('v_add_u32 v31, s13, v31')
    a.e('v_lshrrev_b32 v20, 3, v0')
    a.e('v_min_u32 v20, 42, v20')
    a.e('v_mul_u32_u24 v20, 144, v20')
    a.e(f'v_add_u32 v20, {STG2}, v20')
    a.e('v_and_b32 v21, 7, v0')
    a.e('v_lshlrev_b32 v21, 4, v21')
    a.e('v_add_u32 v22, v20, v21')
    a.e('ds_read_b128 v[32:35], v22')
    a.e('ds_read_b32 v36, v20 offset:128')
    srd_ws(a, 56, WD, 32*43*1024)
    a.e('v_mov_b32 v37, 0x7f000000')
    a.e('v_cmp_gt_u32 vcc, 344, v0')
    a.e('s_waitcnt lgkmcnt(0)')
    a.e('v_add_u32 v36, v36, v21')
    a.e('v_cndmask_b32 v36, v37, v36, vcc')
    a.e(f's_cmp_lg_u32 s3, {PW}')
    a.e('s_cbranch_scc1 WT_W')
    for k in range(4): a.e(f'v_subrev_u32 v{120+k}, s25, v{120+k}')
    for k in range(4): a.e(f'v_and_b32 v{120+k}, 0xffffffc7, v{120+k}')
    for k in range(4): a.e(f'v_subrev_u32 v{120+k}, 2, v{120+k}')
    a.e('v_max3_u32 v120, v120, v121, v122')
    a.e('v_max_u32 v120, v120, v123')
    a.e('v_cmp_lt_u32 vcc, 2, v120')
    a.e('s_nop 1')
    a.e('s_cbranch_vccz WT_W')
    do_wait(2, 64, 'W')
    a.e(f'buffer_store_dwordx4 v[32:35], v36, s[56:59], 0 offen {SC}')
    st.stamp()
    a.e('s_barrier')
    ACC0 = 96; ACC1 = 112; F = [32, 64]
    NU = 8
    def rd(i, k):
        base = F[i % 2] + 4*k
        dst = f'v[{base}:{base+3}]'
        h = k // 4; kk = k % 4
        if kk == 0:   a.e(f'ds_read_b128 {dst}, v26 offset:{32*(126-8*i+h)-192}')
        elif kk == 1: a.e(f'ds_read_b128 {dst}, v30 offset:{UB + (29-4*i)*80 + 32*h}')
        elif kk == 2: a.e(f'ds_read_b128 {dst}, v30 offset:{UB + (61-4*i)*80 + 32*h}')
        else:         a.e(f'ds_read_b128 {dst}, v26 offset:{32*(62-8*i+h)-192}')
    def fr(i, k):
        base = F[i % 2] + 4*k
        return f'v[{base}:{base+3}]'
    for k in range(8): rd(0, k)
    for i in range(NU):
        last = (i == NU-1)
        waits = [6, 7, 8, 8, 9, 8] if not last else [6, 5, 4, 2, 1, 0]
        mf = [(ACC0, 0, 1), (ACC1, 0, 2), (ACC1, 3, 1), (ACC0, 4, 5), (ACC1, 4, 6), (ACC1, 7, 5)]
        for j, (acc, ka, kb) in enumerate(mf):
            a.e(f's_waitcnt lgkmcnt({waits[j]})')
            first = (i == 0 and j < 2)
            src = '0' if first else f'v[{acc}:{acc+15}]'
            a.e(f'v_mfma_f32_32x32x16_f16 v[{acc}:{acc+15}], {fr(i,ka)}, {fr(i,kb)}, {src}')
            if not last and j < 4:
                rd(i+1, 2*j); rd(i+1, 2*j+1)
            if j in (1, 4):
                ks = 2*i + (0 if j == 1 else 1)
                r = 4*ks
                a.e(f'buffer_load_dwordx4 a[{r}:{r+3}], v27, s[52:55], s60 offen offset:{(ks%4)*1024} {SC}')
            if j == 5 and i % 2 == 1 and not last:
                a.e('s_add_u32 s60, s60, 4096')
    st.stamp()
    a.e('s_barrier')
    for cg, acc in ((0, ACC0), (1, ACC1)):
        for i4 in range(4):
            a.e(f'ds_write_b128 v31, v[{acc+4*i4}:{acc+4*i4+3}] offset:{cg*4608 + 32*i4}')
    a.e('v_lshrrev_b32 v6, 3, v0')
    a.e('v_mul_u32_u24 v6, 144, v6')
    a.e('v_and_b32 v7, 7, v0')
    a.e('v_lshl_add_u32 v6, v7, 4, v6')
    a.e(f'v_add_u32 v7, {CH}, v6')
    a.e(f'v_mov_b32 v20, {KSL}')
    a.e('v_lshlrev_b32 v22, 16, v29')
    a.e('v_and_b32 v23, 0xffff0000, v29')
    a.e('s_waitcnt lgkmcnt(0)')
    a.e('s_barrier')
    PR = 32
    a.e('ds_read_b64 v[24:25], v20')
    for c in range(2):
        for p in range(4):
            r = PR + 16*c + 4*p
            a.e(f'ds_read_b128 v[{r}:{r+3}], v{6+c} offset:{p*9216}')
    W = 64
    for l in range(4):
        a.e(f'v_lshlrev_b32 v{W+2*l}, 16, v{UBF+l}')
        a.e(f'v_and_b32 v{W+2*l+1}, 0xffff0000, v{UBF+l}')
    for l in range(4):
        a.e(f'v_mul_f32 v{W+2*l}, v{W+2*l}, v22')
        a.e(f'v_mul_f32 v{W+2*l+1}, v{W+2*l+1}, v23')
    for l in range(4): a.e(f'v_cvt_pk_bf16_f32 v{W+8+l}, v{W+2*l}, v{W+2*l+1}')
    for l in range(4):
        a.e(f'v_lshlrev_b32 v{W+2*l}, 16, v{W+8+l}')
        a.e(f'v_and_b32 v{W+2*l+1}, 0xffff0000, v{W+8+l}')
    a.e('s_waitcnt lgkmcnt(0)')
    for c in range(2):
        r = PR + 16*c
        for l in range(4):
            a.e(f'v_add_f32 v{r+l}, v{r+l}, v{r+4+l}')
            a.e(f'v_add_f32 v{r+8+l}, v{r+8+l}, v{r+12+l}')
        for l in range(4): a.e(f'v_add_f32 v{r+l}, v{r+l}, v{r+8+l}')
        for l in range(4): a.e(f'v_mul_f32 v{r+l}, v{r+l}, v{24+c}')
    for l in range(4): a.e(f'v_cvt_pk_bf16_f32 v{W+8+l}, v{PR+l}, v{PR+16+l}')
    for l in range(4):
        a.e(f'v_lshlrev_b32 v{PR+2*l}, 16, v{W+8+l}')
        a.e(f'v_and_b32 v{PR+2*l+1}, 0xffff0000, v{W+8+l}')
    for l in range(8): a.e(f'v_add_f32 v{W+l}, v{W+l}, v{PR+l}')
    for l in range(4): a.e(f'v_cvt_pk_bf16_f32 v{W+8+l}, v{W+2*l}, v{W+2*l+1}')
    for l in range(4):
        a.e(f'v_lshlrev_b32 v{W+2*l}, 16, v{W+8+l}')
        a.e(f'v_and_b32 v{W+2*l+1}, 0xffff0000, v{W+8+l}')
        a.e(f'v_lshlrev_b32 v{PR+2*l}, 16, v{XR+l}')
        a.e(f'v_and_b32 v{PR+2*l+1}, 0xffff0000, v{XR+l}')
    for l in range(8): a.e(f'v_add_f32 v{W+l}, v{W+l}, v{PR+l}')
    for l in range(4): a.e(f'v_cvt_pk_bf16_f32 v{W+8+l}, v{W+2*l}, v{W+2*l+1}')
    a.e(f'buffer_store_dwordx4 v[{W+8}:{W+11}], v28, s[64:67], s68 offen {SC}')
    a.e('s_mov_b32 s6, s18'); a.e('s_mov_b32 s7, s19'); a.e('s_mov_b32 s9, s21'); a.e('s_mov_b32 s10, s22'); a.e('s_mov_b32 s11, s23')
    srd_ws(a, 44, H2N, 256*H2S); srd_ws(a, 56, HF, 128*172*256); srd_ws(a, 48, WD, 32*43*1024)
    a.e('v_and_b32 v3, 31, v1')
    a.e('v_lshrrev_b32 v4, 5, v1')
    a.e('v_lshl_add_u32 v5, v2, 1, v4')
    a.e(f'v_mul_u32_u24 v8, {4*H2S}, v5')
    a.e('v_lshl_add_u32 v8, v3, 4, v8')
    a.e('s_lshl_b32 s12, s6, 9')
    a.e('v_add_u32 v8, s12, v8')
    a.e('v_mov_b32 v62, v5')
    a.e('s_and_b32 s13, s2, 15')
    a.e('s_lshl_b32 s13, s13, 2')
    a.e('s_waitcnt vmcnt(0)')
    st.stamp()
    if JOBDBG or P2DBG: st.off = True
    a.e('s_barrier')
    do_signal(3, 'B')
    a.e('s_cmp_ge_u32 s3, s21')
    a.e('s_cbranch_scc1 NOWB')
    a.e('v_lshlrev_b32 v7, 4, v1')
    wloads('s23', 64)
    a.label('NOWB')
    do_wait(3, 64, 'B')
    a.e('s_barrier')
    st.stamp()
    HV = 64
    for i in range(4):
        for c in range(4):
            a.e(f's_mov_b32 s13, {(64*i + c)*H2S}')
            r = HV + 16*i + 4*c
            a.e(f'buffer_load_dwordx4 v[{r}:{r+3}], v8, s[44:47], s13 offen {SC}')
    a.e('v_mov_b32 v5, v62')
    a.e('s_and_b32 s4, s7, 1')
    a.e('s_lshl_b32 s5, s6, 1')
    a.e('s_add_u32 s5, s5, s4')
    a.e('s_lshr_b32 s4, s7, 1')
    a.e(f's_mul_i32 s8, s4, {4*43*1024}')
    a.e('s_lshl_b32 s12, s3, 10')
    a.e('s_add_u32 s8, s8, s12')
    for k in range(4): a.e(f's_add_u32 s{60+k}, s8, {k*43*1024}')
    a.e(f's_mul_i32 s8, s5, {4*44032}')
    a.e('s_add_u32 s8, s8, s12')
    for k in range(4): a.e(f's_add_u32 s{64+k}, s8, {k*44032}')
    ln2(a, st)
    a.e('s_cmp_lt_u32 s3, s9')
    a.e('s_cbranch_scc1 G1_TWO')
    a.e('s_cmp_lt_u32 s3, 3')
    a.e('s_cbranch_scc1 G1_16')
    gemm1(a, 1, 5); a.e('s_branch G1_DONE')
    a.label('G1_16')
    gemm1(a, 1, 6); a.e('s_branch G1_DONE')
    a.label('G1_TWO')
    gemm1(a, 2, 6)
    a.label('G1_DONE')
    if G1DBG:
        kk0 = st.k; st.setk(3); st.stamp(force=True); st.setk(kk0)
        a.e('s_add_u32 s87, s83, s26')
    a.e(f's_lshl_b32 s12, s6, {9 if FPL == 4 else 11}')
    a.e('s_waitcnt vmcnt(0)')
    st.stamp()
    a.e('s_barrier')
    do_signal(4, 'C')
    srd_ws(a, 48, HF, 128*172*256); srd(a, 56, 38, 39, 0x200000)
    do_wait(4, 4, 'C', off_sgpr='s12')
    a.e('v_lshlrev_b32 v3, 4, v1')
    a.e('v_lshl_add_u32 v7, v2, 14, v3')
    a.e('s_barrier')
    st.stamp()
    def bfr(j, k):
        jj = j % 5
        return f'v[{48+16*jj+4*k}:{48+16*jj+4*k+3}]'
    def accr(t):
        return f'a[{96+4*t}:{96+4*t+3}]' if t < 8 else f'v[{16+4*(t-8)}:{16+4*(t-8)+3}]'
    def g2body(n):
        def bl(j):
            for k in range(4):
                a.e(f'buffer_load_dwordx4 {bfr(j,k)}, v3, s[48:51], s{64+k} offen {SC}')
            for k in range(4): a.e(f's_add_u32 s{64+k}, s{64+k}, 8192')
        for j in range(5): bl(j)
        issued = 5
        for j in range(n):
            a.e(f's_waitcnt vmcnt({4*(issued-j-1)})')
            if TAILDBG and j == 0: st.setk(1); st.stamp(force=True)
            if TAILDBG and j == n-1: st.setk(2); st.stamp(force=True)
            for aa in range(4):
                for b in range(4):
                    t = 4*aa+b
                    src = '0' if j == 0 else accr(t)
                    a.e(f'v_mfma_f32_16x16x32_bf16 {accr(t)}, {AF(j,aa)}, {bfr(j,b)}, {src}')
                    if j == n-1 and t >= 6:
                        a.e(f'ds_write_b128 v7, {accr(t-6)} offset:{1024*(t-6)}')
            if issued < n:
                bl(issued); issued += 1
        a.e('s_branch G2_RED')
    a.e('s_cmp_ge_u32 s3, 3')
    a.e('s_cbranch_scc1 G2_FIVE')
    g2body(6)
    a.label('G2_FIVE')
    g2body(5)
    a.label('G2_RED')
    if TAILDBG: st.setk(3); st.stamp(force=True)
    a.e('v_and_b32 v4, 15, v1')
    a.e('v_lshrrev_b32 v5, 4, v1')
    a.e('v_lshlrev_b32 v6, 10, v4')
    a.e('v_lshl_add_u32 v6, v5, 3, v6')
    a.e('s_lshl_b32 s8, s5, 16')
    a.e('s_lshl_b32 s9, s4, 7')
    a.e('s_add_u32 s8, s8, s9')
    a.e('s_lshr_b32 s9, s3, 1')
    a.e('s_lshl_b32 s9, s9, 5')
    a.e('s_add_u32 s8, s8, s9')
    a.e('s_and_b32 s13, s3, 1')
    a.e('s_lshl_b32 s14, s13, 15')
    a.e('s_add_u32 s60, s8, s14')
    a.e('s_add_u32 s61, s60, 16384')
    a.e('v_mul_u32_u24 v8, 144, v4')
    a.e('v_lshl_add_u32 v8, v5, 3, v8')
    a.e(f's_mul_i32 s14, s13, {32*144}')
    a.e('s_add_u32 s14, s14, s9')
    a.e(f's_add_u32 s14, s14, {STASH}')
    a.e('v_add_u32 v8, s14, v8')
    a.e('ds_read_b64 v[10:11], v8')
    a.e(f'ds_read_b64 v[12:13], v8 offset:{16*144}')
    a.e('s_nop 7')
    for t in range(10, 16):
        a.e(f'ds_write_b128 v7, {accr(t)} offset:{1024*t}')
    a.e('v_lshl_add_u32 v7, v2, 11, v3')
    a.e('v_add_u32 v9, 65536, v7')
    a.e('s_waitcnt lgkmcnt(0)')
    if TAILDBG: st.setk(4); st.stamp(force=True)
    a.e('s_barrier')
    if TAILDBG: st.setk(5); st.stamp(force=True)
    R = 64
    for b in range(2):
        for p in range(8):
            r = R + 32*b + 4*p
            a.e(f'ds_read_b128 v[{r}:{r+3}], v{7 if p < 4 else 9} offset:{(p%4)*16384 + 1024*b}')
    a.e('s_waitcnt lgkmcnt(0)')
    for b in range(2):
        r = R + 32*b
        for stp in (16, 8, 4):
            for k in range(stp): a.e(f'v_add_f32 v{r+k}, v{r+k}, v{r+k+stp}')
        a.e(f'v_cvt_pk_bf16_f32 v{r+4}, v{r}, v{r+1}')
        a.e(f'v_cvt_pk_bf16_f32 v{r+5}, v{r+2}, v{r+3}')
        for k in range(2):
            a.e(f'v_lshlrev_b32 v{r+2*k}, 16, v{r+4+k}')
            a.e(f'v_and_b32 v{r+2*k+1}, 0xffff0000, v{r+4+k}')
            a.e(f'v_lshlrev_b32 v{r+8+2*k}, 16, v{10+2*b+k}')
            a.e(f'v_and_b32 v{r+8+2*k+1}, 0xffff0000, v{10+2*b+k}')
        for j in range(4): a.e(f'v_add_f32 v{r+j}, v{r+j}, v{r+8+j}')
        a.e(f'v_cvt_pk_bf16_f32 v{r+4}, v{r}, v{r+1}')
        a.e(f'v_cvt_pk_bf16_f32 v{r+5}, v{r+2}, v{r+3}')
        a.e(f'buffer_store_dwordx2 v[{r+4}:{r+5}], v6, s[56:59], s{60+b} offen {OUTSC}')
    if STAMPS:
        a.e('s_waitcnt vmcnt(0)'); st.setk(12); st.stamp(force=True); st.dump(3, 2)
    a.label('KEND')
    a.e('s_endpgm')
    a.raw(kd(NAME, 256, accum=128))
    return a.text()

def AF(j, k):
    b = AFMAP[j] + 4*k
    return f'a[{b}:{b+3}]'
AFMAP = [0, 64, 16, 80, 32, 48]

def ln2(a, st):
    HV = 64
    S = 8; TM = 12; RB = 16
    a.e('v_lshlrev_b32 v48, 4, v3')
    a.e('v_lshl_add_u32 v49, v2, 9, v48')
    for i in range(4):
        a.e(f's_waitcnt vmcnt({12-4*i})')
        for c in range(4):
            for e in range(4):
                src = '0' if (i == 0 and c == 0) else f'v{S+e}'
                a.e(f'v_dot2_f32_bf16 v{S+e}, v{HV+16*i+4*c+e}, s80, {src}', dotc=True)
    st.stamp()
    def xpart(R, red):
        for e in range(4): a.e(f'v_mov_b32 v{TM+e}, v{R+e}')
        for e in range(4): a.e(f'v_permlane32_swap_b32 v{R+e}, v{TM+e}')
        for e in range(4): a.e(f'v_add_f32 v{R+e}, v{R+e}, v{TM+e}')
        a.e(f'v_add_u32 v50, {red}, v49')
        a.e(f'ds_write_b128 v50, v[{R}:{R+3}]')
    def xsum(R, red):
        a.e(f'v_add_u32 v51, {red}, v48')
        for w in range(8):
            a.e(f'ds_read_b128 v[{RB+4*w}:{RB+4*w+3}], v51 offset:{512*w}')
        a.e('s_waitcnt lgkmcnt(0)')
        for stp in (16, 8, 4):
            for k in range(stp): a.e(f'v_add_f32 v{RB+k}, v{RB+k}, v{RB+k+stp}')
        for e in range(4): a.e(f'v_mov_b32 v{R+e}, v{RB+e}')
    xpart(S, RED1)
    a.e('s_lshr_b32 s14, s3, 2')
    a.e('s_and_b32 s15, s4, 1')
    a.e('s_cmp_lg_u32 s14, s15')
    a.e('s_cbranch_scc1 NOHR')
    a.e('s_lshr_b32 s14, s4, 1')
    for i in range(4):
        if i < 3:
            a.e(f's_cmp_lg_u32 s14, {i}')
            a.e(f's_cbranch_scc1 HR{i+1}')
        for e in range(4):
            for c in range(4): a.e(f'v_mov_b32 v{RB+4*e+c}, v{HV+16*i+4*c+e}')
        if i < 3:
            a.e('s_branch HRS')
            a.label(f'HR{i+1}')
    a.label('HRS')
    a.e('v_and_b32 v50, 15, v3')
    a.e(f'v_mul_u32_u24 v50, {4*144}, v50')
    a.e('v_and_b32 v51, 7, v5')
    a.e('v_lshl_add_u32 v50, v51, 4, v50')
    a.e(f'v_add_u32 v50, {STASH}, v50')
    a.e('v_lshrrev_b32 v51, 4, v3')
    a.e('s_and_b32 s15, s7, 1')
    a.e('v_cmp_eq_u32 vcc, s15, v51')
    a.e('s_and_saveexec_b64 s[30:31], vcc')
    for e in range(4):
        a.e(f'ds_write_b128 v50, v[{RB+4*e}:{RB+4*e+3}] offset:{144*e}')
    a.e('s_mov_b64 exec, s[30:31]')
    a.label('NOHR')
    a.e('s_waitcnt lgkmcnt(0)')
    a.e('s_barrier')
    xsum(S, RED1)
    NM = 52; DL = 56
    for e in range(4): a.e(f'v_mul_f32 v{S+e}, {fh(-1.0/512)}, v{S+e}')
    for e in range(0, 4, 2): a.e(f'v_cvt_pk_bf16_f32 v{TM+e}, v{S+e}, v{S+e+1}')
    for e in range(0, 4, 2):
        a.e(f'v_lshlrev_b32 v{NM+e}, 16, v{TM+e}')
        a.e(f'v_and_b32 v{NM+e+1}, 0xffff0000, v{TM+e}')
    for e in range(4): a.e(f'v_sub_f32 v{DL+e}, v{NM+e}, v{S+e}')
    Q2 = 8; DT = 16; OUT = 32
    a.e(f'v_mul_u32_u24 v50, {XB}, v3')
    a.e('v_lshl_add_u32 v50, v5, 4, v50')
    for k in range(8): a.e(f'v_mov_b32 v{Q2+k}, 0')
    for i in range(4):
        for e2 in range(2):
            idx = [(c, e) for e in (2*e2, 2*e2+1) for c in range(4)]
            for k, (c, e) in enumerate(idx):
                r = HV+16*i+4*c+e
                a.e(f'v_dot2_f32_bf16 v{DT+2*k}, v{r}, s81, v{NM+e}')
                a.e(f'v_dot2_f32_bf16 v{DT+2*k+1}, v{r}, s82, v{NM+e}')
            for k, (c, e) in enumerate(idx):
                r = HV+16*i+4*c+e
                a.e(f'v_pk_fma_f32 v[{Q2+2*e}:{Q2+2*e+1}], v[{DT+2*k}:{DT+2*k+1}], v[{DT+2*k}:{DT+2*k+1}], v[{Q2+2*e}:{Q2+2*e+1}]')
                if EXACT: a.e(f'v_cvt_pk_bf16_f32 v{r}, v{DT+2*k}, v{DT+2*k+1}')
                else: a.e(f'v_cvt_pk_bf16_f32 v{OUT+8*(e2^(i&1)^(i&1))+4*(e&1)+c + (16 if False else 0)}, v{DT+2*k}, v{DT+2*k+1}')
            if not EXACT:
                for e in (2*e2, 2*e2+1):
                    o = OUT + 8*e2 + 4*(e&1)
                    a.e(f'ds_write_b128 v50, v[{o}:{o+3}] offset:{e*XA + 256*i}')
    Q = 60
    for e in range(4): a.e(f'v_add_f32 v{Q+e}, v{Q2+2*e}, v{Q2+2*e+1}')
    xpart(Q, RED2)
    a.e('s_waitcnt lgkmcnt(0)')
    a.e('s_barrier')
    global qfin
    def qfin():
        Q = 8; DL = 24
        a.e(f'ds_read_b128 v[8:11], v23')
        a.e(f'ds_read_b128 v[12:15], v23 offset:512')
        a.e(f'ds_read_b128 v[16:19], v23 offset:1024')
        a.e('s_waitcnt lgkmcnt(0)')
        for w in range(3, 9, 2):
            for e in range(4): a.e(f'v_add_f32 v{12+e}, v{12+e}, v{16+e}')
            for e in range(4): a.e(f'v_add_f32 v{8+e}, v{8+e}, v{12+e}')
            if w < 8:
                a.e(f'ds_read_b128 v[12:15], v23 offset:{512*w}')
                if w + 1 < 8: a.e(f'ds_read_b128 v[16:19], v23 offset:{512*(w+1)}')
                else:
                    for e in range(4): a.e(f'v_mov_b32 v{16+e}, 0')
                a.e('s_waitcnt lgkmcnt(0)')
        for e in range(4): a.e(f'v_add_f32 v{8+e}, v{8+e}, v{12+e}')
        for e in range(4): a.e(f'v_mul_f32 v{DL+e}, v{DL+e}, v{DL+e}')
        a.e(f's_mov_b32 s15, {fh(1.0/512)}')
        for e in range(4): a.e(f'v_fma_f32 v{Q+e}, v{Q+e}, s15, -v{DL+e}')
        for e in range(4): a.e(f'v_max_f32 v{Q+e}, 0, v{Q+e}')
        for e in range(4): a.e(f'v_cvt_pk_bf16_f32 v{Q+e}, v{Q+e}, v{Q+e}')
        for e in range(4): a.e(f'v_and_b32 v{Q+e}, 0xffff0000, v{Q+e}')
        for e in range(4): a.e(f'v_add_f32 v{Q+e}, {fh(1e-5)}, v{Q+e}')
        for e in range(4): a.e(f'v_cvt_pk_bf16_f32 v{Q+e}, v{Q+e}, v{Q+e}')
        for e in range(4): a.e(f'v_and_b32 v{Q+e}, 0xffff0000, v{Q+e}')
        for e in range(4): a.e(f'v_sqrt_f32 v{Q+e}, v{Q+e}')
        for e in range(4): a.e(f'v_cvt_pk_bf16_f32 v{Q+e}, v{Q+e}, v{Q+e}')
        for e in range(4): a.e(f'v_and_b32 v{Q+e}, 0xffff0000, v{Q+e}')
        for e in range(4): a.e(f'v_rcp_f32 v{Q+e}, v{Q+e}')
        a.e(f'v_add_u32 v22, {RSL-RED2}, v23')
        a.e(f'ds_write_b128 v22, v[{Q}:{Q+3}]')
        a.e('s_waitcnt lgkmcnt(0)')
        for lam in range(8): a.e(f'ds_read_b32 v{8+2*lam}, v31 offset:{64*lam}')
        a.e('s_waitcnt lgkmcnt(0)')
    assert not EXACT
    a.e(f'v_add_u32 v23, {RED2}, v48')
    for e in range(4): a.e(f'v_mov_b32 v{24+e}, v{DL+e}')
    a.e('v_and_b32 v3, 15, v1')
    a.e('v_lshrrev_b32 v4, 4, v1')
    a.e('v_and_b32 v5, 3, v3')
    a.e(f'v_mul_u32_u24 v5, {XA}, v5')
    a.e('v_lshrrev_b32 v6, 2, v3')
    a.e(f'v_mul_u32_u24 v6, {XB}, v6')
    a.e('v_add_u32 v5, v5, v6')
    a.e('v_lshl_add_u32 v28, v4, 4, v5')
    a.e(f'v_add_u32 v29, {4*4*XB}, v28')
    a.e(f'v_mul_u32_u24 v30, {172*256}, v4')
    a.e('v_lshl_add_u32 v30, v3, 4, v30')
    a.e('v_lshlrev_b32 v31, 2, v3')
    a.e(f'v_add_u32 v31, {RSL}, v31')
    a.e('v_lshlrev_b32 v7, 4, v1')
    a.e('s_waitcnt lgkmcnt(0)')
    st.stamp()
    if EXACT: a.e('s_barrier')

def gemm1(a, nt, nk):
    st = GST
    XF = 32; ACC = 64
    def rdgrp(ks, g):
        for k in range(4):
            r = XF + 16*g + 4*k
            a.e(f'ds_read_b128 v[{r}:{r+3}], v{28+g} offset:{k*4*XB + 64*ks}')
    def mfgrp(ks, g):
        for k in range(4):
            lam = 4*g + k
            for t in range(nt):
                acc = ACC + 32*t + 4*lam
                src = '0' if ks == 0 else f'v[{acc}:{acc+3}]'
                a.e(f'v_mfma_f32_16x16x32_bf16 v[{acc}:{acc+3}], a[{64*t+4*ks}:{64*t+4*ks+3}], v[{XF+16*g+4*k}:{XF+16*g+4*k+3}], {src}')
    def wd(j):
        for k in range(4):
            a.e(f'buffer_load_dwordx4 {AF(j,k)}, v7, s[48:51], s{60+k} offen offset:0 {SC}')
        for k in range(4): a.e(f's_add_u32 s{60+k}, s{60+k}, 8192')
    free_after = [(AFMAP[j]//4 + 3) if AFMAP[j] < 64 else ((AFMAP[j]-64)//4 + 3 if nt == 2 else -1) for j in range(nk)]
    sched = []; cur = -1
    for j in range(nk):
        cur = max(cur, free_after[j]); sched.append(cur)
    rdgrp(0, 0)
    for ks in range(16):
        rdgrp(ks, 1)
        a.e('s_waitcnt lgkmcnt(4)')
        mfgrp(ks, 0)
        if ks < 15:
            rdgrp(ks+1, 0)
            a.e('s_waitcnt lgkmcnt(4)')
        else:
            a.e('s_waitcnt lgkmcnt(0)')
        mfgrp(ks, 1)
        for j in range(nk):
            if sched[j] == ks and ks < 15: wd(j)
        if ks == 1: qfin()
    if G1DBG: kk0 = st.k; st.setk(1); st.stamp(force=True); st.setk(kk0)
    for j in range(nk):
        if sched[j] >= 15: wd(j)
    if G1DBG: kk0 = st.k; st.setk(2); st.stamp(force=True); st.setk(kk0)
    for t in range(nt):
        ts = 's10' if t == 0 else 's11'
        a.e('s_mul_i32 s14, s6, 1376')
        a.e(f's_add_u32 s14, s14, {ts}')
        a.e('s_lshl_b32 s14, s14, 8')
        for half in range(2):
            ob = 24 + 0
            OUTR = 32 + 4*((2*t+half) % 4)
            for l4 in range(4):
                lam = 4*half + l4
                acc = ACC + 32*t + 4*lam
                b = 48 + 8*(lam % 2)
                for k in (0, 2):
                    a.e(f'v_pk_mul_f32 v[{acc+k}:{acc+k+1}], v[{acc+k}:{acc+k+1}], v[{8+2*lam}:{9+2*lam}] op_sel:[0,0] op_sel_hi:[1,0]')
                a.e(f'v_cvt_pk_bf16_f32 v{b}, v{acc}, v{acc+2}')
                a.e(f'v_cvt_pk_bf16_f32 v{b+1}, v{acc+1}, v{acc+3}')
                a.e(f'v_pk_max_i16 v{b}, v{b}, 0')
                a.e(f'v_lshlrev_b32 v{b+4}, 16, v{b+1}')
                a.e(f'v_and_b32 v{b+5}, 0xffff0000, v{b+1}')
                a.e(f'v_lshlrev_b32 v{b+2}, 16, v{b}')
                a.e(f'v_and_b32 v{b+3}, 0xffff0000, v{b}')
                a.e(f'v_mul_f32 v{b+2}, v{b+2}, v{b+4}')
                a.e(f'v_mul_f32 v{b+3}, v{b+3}, v{b+5}')
                a.e(f'v_cvt_pk_bf16_f32 v{OUTR+l4}, v{b+2}, v{b+3}')
            a.e(f'v_permlane16_swap_b32 v{OUTR}, v{OUTR+1}')
            a.e(f'v_permlane16_swap_b32 v{OUTR+2}, v{OUTR+3}')
            a.e(f'v_permlane32_swap_b32 v{OUTR}, v{OUTR+2}')
            a.e(f'v_permlane32_swap_b32 v{OUTR+1}, v{OUTR+3}')
            lab = f'HS_{nt}{nk}{t}{half}'
            if not LOCAL:
                a.e(f'buffer_store_dwordx4 v[{OUTR}:{OUTR+3}], v30, s[56:59], s14 offen {SC}')
                if half == 0: a.e(f's_add_u32 s14, s14, {4*172*256}')
                continue
            a.e('s_cmp_eq_u32 s26, 1')
            a.e(f's_cbranch_scc1 {lab}a')
            a.e(f'buffer_store_dwordx4 v[{OUTR}:{OUTR+3}], v30, s[56:59], s14 offen {SC}')
            a.e(f's_branch {lab}b')
            a.label(f'{lab}a')
            a.e('s_nop 1')
            a.e(f'buffer_store_dwordx4 v[{OUTR}:{OUTR+3}], v30, s[56:59], s14 offen')
            a.label(f'{lab}b')
            if half == 0: a.e(f's_add_u32 s14, s14, {4*172*256}')

def build():
    hdr = open('sequential_preLN__ssm_conv_s4d__glu_gated_reglu__prompt.s.ref').read().split('\n')
    cm = [l for l in hdr if l.startswith(';') and '@launch' not in l]
    L = [f'; @launch grid=({GRID},1,1) block=(512,1,1) lds={LDS}']
    return '\n'.join(cm + L) + '\n.amdgcn_target "amdgcn-amd-amdhsa--gfx950"\n.text\n' + gen()
if __name__ == '__main__':
    out = sys.argv[1] if len(sys.argv) > 1 else 'fused16.s'
    open(out, 'w').write(build())
```
